```python
import torch

def _softmax(x, axis=-1):
    return torch.softmax(x, dim=axis)
def _gelu(x):
    return torch.nn.functional.gelu(x, approximate="tanh")
def _silu(x):
    return torch.nn.functional.silu(x)
def _sigmoid(x):
    return torch.sigmoid(x)
def _layernorm(x, axis=-1, eps=1e-5):
    m = x.mean(dim=axis, keepdim=True)
    v = x.var(dim=axis, keepdim=True, unbiased=False)
    return (x - m) / torch.sqrt(v + eps)
def _scatter_add(tgt, idx, src, axis=0):
    return tgt.clone().index_add_(axis, idx, src)
def _segment_sum(src, seg, n):
    out = torch.zeros((n,) + src.shape[1:], dtype=src.dtype)
    return out.index_add_(0, seg, src)
def _pad(x, pw):
    flat = tuple(v for pair in reversed(pw) for v in pair)
    return torch.nn.functional.pad(x, flat)

kernel_name = 'interleave_layers__spectral_gfnet__dense_activation_gelu__prompt'

def setup_inputs():

    _w = (lambda a: (lambda t: t.to(torch.bfloat16) if t.is_floating_point() else t)(torch.as_tensor(a)))
    def _A_setup():
        B, S, D = 1, 2048, 1024
        Df = D // 2 + 1
        return {
            "x": _w((lambda *s: torch.randn(*s, dtype=torch.bfloat16) * 0.05)(B, S, D)),
            "w_r": _w((lambda *s: torch.randn(*s, dtype=torch.bfloat16) * 0.4)(S, Df) * 0.02),
            "w_i": _w((lambda *s: torch.randn(*s, dtype=torch.bfloat16) * 0.4)(S, Df) * 0.02),
        }
    _A_in = _A_setup()

    def _B_setup():
        B, S, D, F = 1, 2048, 1024, 3584
        return {
            "x": _w((lambda *s: torch.randn(*s, dtype=torch.bfloat16) * 0.05)(B, S, D)),
            "w1": _w((lambda *s: torch.randn(*s, dtype=torch.bfloat16) * 0.4)(D, F) * (D ** -0.5)),
            "b1": _w((lambda *s: torch.randn(*s, dtype=torch.bfloat16) * 12.8)(F) * 0.01),
            "w2": _w((lambda *s: torch.randn(*s, dtype=torch.bfloat16) * 0.1)(F, D) * (F ** -0.5)),
            "b2": _w((lambda *s: torch.randn(*s, dtype=torch.bfloat16) * 0.8)(D) * 0.01),
        }
    _B_in = _B_setup()

    return {
        "A_x": _A_in["x"],
        "A_w_r": _A_in["w_r"],
        "A_w_i": _A_in["w_i"],
        "B_x": _B_in["x"],
        "B_w1": _B_in["w1"],
        "B_b1": _B_in["b1"],
        "B_w2": _B_in["w2"],
        "B_b2": _B_in["b2"],
    }

def reference(A_x, A_w_r, A_w_i, B_x, B_w1, B_b1, B_w2, B_b2):
    def _A_ref(x, w_r, w_i):
        B, S, D = x.shape
        X = (lambda x, axes=(-2,-1): torch.fft.rfft2(x.float(), dim=axes))(x, axes=(-2, -1))
        W = w_r + 1j * w_i
        X = X * W
        y = (lambda x, s, axes=(-2,-1): torch.fft.irfft2(x, s=s, dim=axes).to(torch.bfloat16))(X, (S, D), axes=(-2, -1))
        return y

    def _B_ref(x, w1, b1, w2, b2):
        h = torch.einsum("bsd,df->bsf", x, w1) + b1
        h = _gelu(h)
        return torch.einsum("bsf,fd->bsd", h, w2) + b2

    x = A_x
    x = x + _A_ref(_layernorm(x, axis=-1), A_w_r, A_w_i)
    x = x + _B_ref(_layernorm(x, axis=-1), B_w1, B_b1, B_w2, B_b2)
    x = x + _A_ref(_layernorm(x, axis=-1), A_w_r, A_w_i)
    x = x + _B_ref(_layernorm(x, axis=-1), B_w1, B_b1, B_w2, B_b2)
    return x
```

```python
import re

def v(i, n=1):
    return f"v{i}" if n == 1 else f"v[{i}:{i+n-1}]"
def a(i, n=1):
    return f"a{i}" if n == 1 else f"a[{i}:{i+n-1}]"
def s(i, n=1):
    return f"s{i}" if n == 1 else f"s[{i}:{i+n-1}]"

_REG = re.compile(r"^(?:-|neg\()?(?:abs\(|\|)?([vas])(?:(\d+)|\[(\d+):(\d+)\])(?:\)|\|)?\)?$")

def regs_of(tok):
    tok = tok.strip()
    if tok in ("vcc",):
        return [("s", 106), ("s", 107)]
    if tok == "vcc_lo": return [("s", 106)]
    if tok == "vcc_hi": return [("s", 107)]
    if tok == "exec": return [("s", 126), ("s", 127)]
    if tok == "exec_lo": return [("s", 126)]
    if tok == "exec_hi": return [("s", 127)]
    if tok == "m0": return [("s", 124)]
    m = _REG.match(tok)
    if not m:
        return []
    f = m.group(1)
    if m.group(2) is not None:
        return [(f, int(m.group(2)))]
    return [(f, i) for i in range(int(m.group(3)), int(m.group(4)) + 1)]

TRANS = ("v_exp_f32", "v_log_f32", "v_rcp_f32", "v_rsq_f32", "v_sqrt_f32", "v_sin_f32", "v_cos_f32")
RMW = ("v_fmac_f32", "v_dot2c_f32_bf16", "v_pk_fmac", "v_fmac_f32_e32")

class Ins:
    __slots__ = ("text", "op", "dst", "src", "kind", "passes", "srcC", "srcAB", "dpp", "wide_store", "store_data",
                 "lds_dma", "states", "is_trans", "is_dot")

def parse(text):
    t = text.split(";")[0].strip()
    op, _, rest = t.partition(" ")
    ops, depth, cur = [], 0, ""
    for ch in rest:
        if ch in "[(": depth += 1
        if ch in "])": depth -= 1
        if ch == "," and depth == 0:
            ops.append(cur.strip()); cur = ""
        else:
            cur += ch
    if cur.strip():
        ops.append(cur.strip())
    mods = ""
    if ops:
        last = ops[-1].split(None, 1)
        ops[-1] = last[0]
        mods = last[1] if len(last) > 1 else ""
    I = Ins()
    I.text, I.op = text, op
    I.dst, I.src, I.srcC, I.srcAB, I.store_data = [], [], [], [], []
    I.passes = 0; I.dpp = False; I.wide_store = False; I.lds_dma = False; I.states = 1
    I.is_trans = False; I.is_dot = False
    R = [regs_of(o) for o in ops]
    flat = lambda L: [r for x in L for r in x]
    if op.startswith("v_mfma"):
        I.kind = "mfma"
        I.dst = R[0]; I.srcAB = R[1] + R[2]; I.srcC = R[3]; I.src = I.srcAB + I.srcC
        I.passes = 8 if "32x32" in op else 4
    elif op.startswith("v_"):
        I.kind = "valu"
        I.dpp = "_dpp" in op or "row_" in mods or "quad_perm" in mods
        base = op.replace("_e32", "").replace("_e64", "").replace("_dpp", "")
        I.is_trans = base in TRANS
        I.is_dot = base.startswith("v_dot")
        if base in ("v_swap_b32", "v_permlane16_swap_b32", "v_permlane32_swap_b32"):
            I.dst = R[0] + R[1]; I.src = R[0] + R[1]
        elif base in ("v_add_co_u32", "v_sub_co_u32", "v_addc_co_u32", "v_subb_co_u32"):
            I.dst = R[0] + R[1]; I.src = flat(R[2:])
        elif base == "v_nop":
            pass
        else:
            I.dst = R[0]; I.src = flat(R[1:])
            if base in RMW or I.dpp:
                I.src = I.src + R[0]
    elif op.startswith("ds_"):
        I.kind = "ds"
        if op.startswith("ds_read") or op.startswith("ds_bpermute") or op.startswith("ds_permute") or op.startswith("ds_swizzle"):
            I.dst = R[0]; I.src = flat(R[1:])
        else:
            I.src = flat(R)
    elif op.startswith("buffer_") or op.startswith("global_"):
        I.kind = "vmem"
        lds = (" lds" in " " + mods) or "_lds_" in op
        if "store" in op:
            I.src = flat(R)
            I.store_data = R[0] if op.startswith("buffer_") else R[1]
            I.wide_store = op.endswith("x4") or op.endswith("x3")
        elif op in ("buffer_wbl2", "buffer_inv"):
            pass
        elif "atomic" in op:
            I.src = flat(R)
            if "sc0" in mods:
                I.dst = R[0]
        elif lds:
            I.lds_dma = True
            I.src = flat(R) + [("s", 124)]
        else:
            I.dst = R[0]; I.src = flat(R[1:])
            if "d16" in op:
                I.src = I.src
    elif op.startswith("s_"):
        if op.startswith("s_load") or op.startswith("s_memtime") or op.startswith("s_memrealtime"):
            I.kind = "smem"; I.dst = R[0]; I.src = flat(R[1:])
        elif op == "s_nop":
            I.kind = "nop"; I.states = int(ops[0], 0) + 1
        elif op == "s_waitcnt":
            I.kind = "wait"
        elif op.startswith("s_cmp") or op.startswith("s_bitcmp"):
            I.kind = "salu"; I.src = flat(R)
        elif op.startswith("s_cbranch") or op in ("s_branch", "s_barrier", "s_endpgm", "s_setprio", "s_sleep"):
            I.kind = "sctl"
        elif op.endswith("saveexec_b64"):
            I.kind = "salu"; I.dst = R[0] + [("s", 126), ("s", 127)]; I.src = flat(R[1:])
        else:
            I.kind = "salu"; I.dst = R[0] if R else []; I.src = flat(R[1:])
    else:
        raise ValueError("unknown instruction: " + text)
    return I

def _ov(x, y):
    return bool(set(x) & set(y))

def required(prev, cur):
    need = 0
    pv = [r for r in prev.dst if r[0] in "va"]
    ps = [r for r in prev.dst if r[0] == "s"]
    if prev.kind == "valu":
        if cur.kind == "mfma" and _ov(pv, cur.src): need = max(need, 2)
        if cur.kind == "valu":
            if cur.dpp and _ov(pv, cur.src): need = max(need, 2)
            if cur.op.startswith("v_permlane") and _ov(pv, cur.src): need = max(need, 2)
            if (cur.op.startswith("v_readlane") or cur.op.startswith("v_readfirstlane")) and _ov(pv, cur.src): need = max(need, 1)
            if prev.is_trans and not cur.is_trans and _ov(pv, cur.src): need = max(need, 1)
            if _ov(ps, cur.src):
                need = max(need, 4 if (cur.op.startswith("v_readlane") or cur.op.startswith("v_writelane")) else 2)
            if prev.is_dot and _ov(pv, cur.src + cur.dst):
                same_c = cur.op == prev.op and not _ov(pv, [r for r in cur.src if r not in cur.dst])
                if not same_c: need = max(need, 3)
        if prev.is_trans and cur.kind in ("mfma", "ds", "vmem") and _ov(pv, cur.src): need = max(need, 2)
        if prev.is_dot and cur.kind in ("mfma", "ds", "vmem") and _ov(pv, cur.src): need = max(need, 3)
        if cur.kind == "vmem" and _ov(ps, cur.src): need = max(need, 5)
        if cur.kind in ("salu", "smem") and _ov(ps, cur.src): need = max(need, 1)
    if prev.kind == "mfma":
        d = {4: 8, 8: 12}[prev.passes]
        if cur.kind == "mfma":
            if _ov(pv, cur.srcAB): need = max(need, d)
            if _ov(pv, cur.srcC):
                exact = cur.srcC == prev.dst and cur.passes == prev.passes
                need = max(need, 0 if exact else d - 2)
            elif _ov(pv, cur.dst):
                need = max(need, d - 2)
        elif cur.kind in ("valu", "ds", "vmem"):
            if _ov(pv, cur.src + cur.dst): need = max(need, d)
        if cur.kind == "valu" and _ov(prev.srcC, cur.dst): need = max(need, prev.passes - 1)
    if prev.kind == "vmem" and prev.wide_store and _ov(prev.store_data, cur.dst):
        need = max(need, 2 if cur.kind in ("valu", "mfma") else 1)
    if prev.kind == "ds" and prev.op in ("ds_write_b128", "ds_write_b96") and cur.kind == "valu" and _ov(prev.src, cur.dst):
        need = max(need, 1)
    if prev.kind == "salu" and ("s", 124) in ps and cur.lds_dma: need = max(need, 1)
    return need

class Asm:
    def __init__(self):
        self.lines = []
        self.hist = []
        self.vm = []
        self.lg = []
        self.check = True
        self.nops = 0
        self.maxv = -1; self.maxa = -1; self.maxs = -1

    def raw(self, text):
        self.lines.append(text)

    def comment(self, text):
        self.lines.append("    ; " + text)

    def label(self, name, reset=True):
        self.lines.append(name + ":")

    def reset(self):
        self.hist = []; self.vm = []; self.lg = []

    def snapshot(self):
        return (list(self.hist), list(self.vm), list(self.lg))

    def restore(self, snap):
        self.hist, self.vm, self.lg = list(snap[0]), list(snap[1]), list(snap[2])

    def __call__(self, text):
        for line in text.strip().split("\n"):
            line = line.strip()
            if not line or line.startswith(";"):
                continue
            self.emit(line)

    def emit(self, text):
        I = parse(text)
        for f, i in I.dst + I.src:
            if f == "v": self.maxv = max(self.maxv, i)
            elif f == "a": self.maxa = max(self.maxa, i)
            elif i < 102: self.maxs = max(self.maxs, i)
        dist, need = 0, 0
        for p in reversed(self.hist):
            r = required(p, I)
            if r > dist:
                need = max(need, r - dist)
            dist += p.states
            if dist > 24:
                break
        while need > 0:
            n = min(need, 16)
            self._push(parse(f"s_nop {n-1}"))
            self.nops += 1
            need -= n
        if I.kind == "wait":
            m = re.search(r"vmcnt\((\d+)\)", text)
            if m:
                n = int(m.group(1)); assert n <= 63
                self.vm = self.vm[len(self.vm) - n:] if n < len(self.vm) else self.vm
                if n == 0: self.vm = []
            m = re.search(r"lgkmcnt\((\d+)\)", text)
            if m:
                n = int(m.group(1)); assert n <= 15
                if n == 0: self.lg = []
                else:
                    assert all(k == "ds" for k, _ in self.lg), "counted lgkmcnt with SMEM outstanding: " + text
                    self.lg = self.lg[len(self.lg) - n:] if n < len(self.lg) else self.lg
        elif self.check:
            touched = set(I.src) | set(I.dst)
            for d in self.vm:
                bad = touched & set(d)
                if bad and not ("d16" in I.op):
                    raise AssertionError(f"vmcnt not waited for {sorted(bad)} at: {text}")
            for k, d in self.lg:
                bad = touched & set(d)
                if bad:
                    raise AssertionError(f"lgkmcnt not waited for {sorted(bad)} at: {text}")
        if I.kind == "vmem" and I.op not in ("buffer_wbl2", "buffer_inv"):
            self.vm.append(list(I.dst))
            assert len(self.vm) <= 63, "more than 63 vmem ops outstanding at: " + text
        if I.kind == "ds":
            self.lg.append(("ds", list(I.dst)))
        if I.kind == "smem":
            self.lg.append(("smem", list(I.dst)))
        self._push(I)

    def _push(self, I):
        self.lines.append("    " + I.text)
        self.hist.append(I)
        if len(self.hist) > 40:
            self.hist = self.hist[-40:]

    def vm_wait_for(self, regs):
        regs = set(regs)
        last = -1
        for i, d in enumerate(self.vm):
            if regs & set(d): last = i
        if last >= 0:
            self.emit(f"s_waitcnt vmcnt({len(self.vm) - 1 - last})")

    def lg_wait_for(self, regs):
        regs = set(regs)
        last = -1
        for i, (k, d) in enumerate(self.lg):
            if regs & set(d): last = i
        if last >= 0:
            n = len(self.lg) - 1 - last
            if any(k != "ds" for k, _ in self.lg) or n > 15: n = 0 if any(k != "ds" for k, _ in self.lg) else 15
            self.emit(f"s_waitcnt lgkmcnt({n})")

    def text(self):
        return "\n".join(self.lines) + "\n"

def R(f, i, n=1):
    return [(f, i + k) for k in range(n)]

def kernel_desc(name, vgpr, agpr, sgpr):
    acc = max(4, (vgpr + 3) // 4 * 4)
    nfv = acc + agpr if agpr else vgpr
    return f""".amdhsa_kernel {name}
  .amdhsa_next_free_vgpr {nfv}
  .amdhsa_next_free_sgpr {sgpr}
  .amdhsa_accum_offset {acc}
  .amdhsa_group_segment_fixed_size 0
  .amdhsa_kernarg_size 88
  .amdhsa_user_sgpr_count 2
  .amdhsa_user_sgpr_kernarg_segment_ptr 1
  .amdhsa_system_sgpr_workgroup_id_x 1
.end_amdhsa_kernel
"""
```

```python
import numpy as np

MB = 1 << 20
OFF_WP = 0
OFF_W1P = 4 * MB
OFF_W2P = 12 * MB
OFF_X2 = 20 * MB
def LOFF(l): return 32 * MB + l * 48 * MB
O_F1, O_F2, O_X1, O_ZN, O_HP = 0, 4 * MB, 8 * MB, 12 * MB, 16 * MB

def bf16_bits(x):
    u = np.asarray(x, dtype=np.float32).view(np.uint32).astype(np.uint64)
    r = (u + 0x7FFF + ((u >> 16) & 1)) >> 16
    return (r & 0xFFFF).astype(np.uint32)

def bf16_to_f(b):
    return (np.asarray(b).astype(np.uint32) << 16).view(np.float32)

def pk(lo, hi):
    return (bf16_bits(lo) | (bf16_bits(hi) << 16)).astype(np.uint32)

def f32_bits(x):
    return np.asarray(x, dtype=np.float32).view(np.uint32)

lane = np.arange(64)
G = lane >> 4
C = lane & 15

def cosr(num, den):
    x = np.cos(2 * np.pi * (np.asarray(num) % den) / den)
    return np.where(np.abs(x) < 1e-12, 0.0, x)
def sinr(num, den):
    x = np.sin(2 * np.pi * (np.asarray(num) % den) / den)
    return np.where(np.abs(x) < 1e-12, 0.0, x)

def chunk(fn):
    return np.stack([fn(i) for i in range(4)], axis=1).astype(np.uint32)

def tables():
    T = {}
    T["k1"] = [
        chunk(lambda u: pk(cosr(C * (8 * G + 2 * u), 32), cosr(C * (8 * G + 2 * u + 1), 32))),
        chunk(lambda u: pk(-sinr(C * (8 * G + 2 * u), 32), -sinr(C * (8 * G + 2 * u + 1), 32))),
    ]
    feff = np.where(C == 0, 16, C)
    for fn in (cosr, sinr):
        for q in range(2):
            T["k1"].append(chunk(lambda i: f32_bits(fn((8 * G + 2 * i + q) * feff, 1024))))
    T["k2"] = [
        chunk(lambda i: pk(cosr((4 * G + i) * C, 16), sinr((4 * G + i) * C, 16))),
        chunk(lambda i: pk(-sinr((4 * G + i) * C, 16), cosr((4 * G + i) * C, 16))),
        chunk(lambda i: f32_bits(cosr((4 * G + i) * C, 256))),
        chunk(lambda i: f32_bits(sinr((4 * G + i) * C, 256))),
    ]
    T["k3"] = []
    for q in range(2):
        T["k3"].append(chunk(lambda i: pk(cosr((2 * C + q) * (4 * G + i), 32), -sinr((2 * C + q) * (4 * G + i), 32))))
        T["k3"].append(chunk(lambda i: pk(sinr((2 * C + q) * (4 * G + i), 32), cosr((2 * C + q) * (4 * G + i), 32))))
    for at in range(2):
        def h(i):
            f = 4 * G + i
            aa = 16 * at + C
            lo = np.where(f == 0, (-1.0) ** aa, cosr(aa * f, 32))
            hi = np.where(f == 0, 1.0, -sinr(aa * f, 32))
            return pk(lo, hi)
        T["k3"].append(chunk(h))
    for fn in (cosr, sinr):
        for q in range(2):
            def tw(i):
                f = 4 * G + i
                fe = np.where(f == 0, 16, f)
                return f32_bits(fn((2 * C + q) * fe, 1024))
            T["k3"].append(chunk(tw))
    return T

def gslot_bins():
    gam = np.arange(512)
    w = gam >> 6
    tau = ((gam >> 5) & 1) * 2 + (gam & 1)
    f = (gam >> 1) & 15
    d = 4 * w + tau
    b = f + 32 * d
    b = np.where((f == 0) & (d >= 16), 16 + 32 * d, b)
    b = np.where((f == 0) & (d == 0), 512, b)
    return b

def w1_frag_H(nt, ft):
    if nt % 2 == 0:
        return 7 * nt + ft
    return 7 * nt + 1 + ft if ft < 6 else 7 * nt

def exp_WP(wr_bits, wi_bits):
    bins = gslot_bins()
    out = np.zeros((4, 512, 2, 64, 4), np.uint32)
    for p in range(4):
        for par in range(2):
            jp = 2 * p + par
            for i in range(4):
                e = C + 16 * (4 * G + i)
                kap = jp + 8 * e
                mir = bins > 512
                row = np.where(mir[:, None], (2048 - kap[None, :]) % 2048, kap[None, :])
                col = np.where(mir, 1024 - bins, bins)[:, None] + 0 * row
                val = wr_bits[row, col].astype(np.uint32) | (wi_bits[row, col].astype(np.uint32) << 16)
                val = np.where(mir[:, None], val ^ 0x80000000, val)
                out[p, :, par, :, i] = val
    return out

def exp_W1P(w1_bits):
    out = np.zeros((32, 32, 7, 64, 8), np.uint16)
    for nt in range(32):
        for ft in range(7):
            H = w1_frag_H(nt, ft)
            feat = 32 * (H >> 1) + 8 * (C >> 2) + 4 * (H & 1) + (C & 3)
            for j in range(8):
                k = 32 * np.arange(32)[:, None] + (8 * G + j)[None, :]
                out[nt, :, ft, :, j] = w1_bits[k, feat[None, :]]
    return out

def exp_W2P(w2_bits):
    out = np.zeros((16, 112, 4, 64, 8), np.uint16)
    for nt in range(16):
        for ft in range(4):
            feat = 64 * nt + 32 * (ft >> 1) + 8 * (C >> 2) + 4 * (ft & 1) + (C & 3)
            for j in range(8):
                k = 32 * np.arange(112)[:, None] + (8 * G + j)[None, :]
                out[nt, :, ft, :, j] = w2_bits[k, feat[None, :]]
    return out

def ln(x):
    m = x.mean(-1, keepdims=True)
    v = x.var(-1, keepdims=True)
    return (x - m) / np.sqrt(v + 1e-5)

def exp_F1(x):
    z = ln(x)
    Rf = np.fft.fft(z, axis=1)[:, gslot_bins()]
    Rf[:, 0] *= 0.5
    Rf = Rf.reshape(8, 256, 512)
    T = np.fft.fft(Rf, axis=0)
    tw = np.exp(-2j * np.pi * np.arange(8)[:, None] * np.arange(256)[None, :] / 2048)
    T = T * tw[:, :, None]
    return T.reshape(4, 2, 256, 512).transpose(0, 2, 3, 1)

def exp_F2(F1, wr, wi):
    bins = gslot_bins()
    W = wr + 1j * wi
    kap = np.arange(2048)
    Wf = np.where((bins > 512)[None, :], np.conj(W[(2048 - kap) % 2048][:, np.where(bins > 512, 1024 - bins, 0)]),
                  W[:, np.where(bins > 512, 0, bins)])
    T = F1.transpose(0, 3, 1, 2).reshape(8, 256, 512)
    X = np.fft.fft(T, axis=1)
    Wf = Wf.reshape(256, 8, 512).transpose(1, 0, 2)
    Y = np.fft.ifft(X * Wf, axis=1) * 256
    return Y.reshape(4, 2, 256, 512).transpose(0, 2, 3, 1)

def exp_y(F2):
    bins = gslot_bins()
    T = F2.transpose(0, 3, 1, 2).reshape(8, 256, 512)
    tw = np.exp(2j * np.pi * np.arange(8)[:, None] * np.arange(256)[None, :] / 2048)
    R2 = np.fft.ifft(T * tw[:, :, None], axis=0) * 8
    R2 = R2.reshape(2048, 512)
    full = np.zeros((2048, 1024), complex)
    full[:, bins] = R2
    y = np.fft.ifft(full, axis=1).real * 1024
    return y * 2.0 ** -20

def zn_tile(z):
    return z.reshape(128, 16, 16, 64).transpose(0, 2, 1, 3)
def zn_untile(t):
    return t.reshape(128, 16, 16, 64).transpose(0, 2, 1, 3).reshape(2048, 1024)

def hp_untile(t):
    return t.reshape(128, 112, 4, 16, 8).transpose(0, 3, 1, 2, 4).reshape(2048, 3584)

def gelu(h):
    return 0.5 * h * (1 + np.tanh(np.sqrt(2 / np.pi) * (h + 0.044715 * h ** 3)))

def cplx(buf_u32):
    return bf16_to_f(buf_u32 & 0xFFFF).astype(np.float64) + 1j * bf16_to_f(buf_u32 >> 16).astype(np.float64)

if __name__ == "__main__":
    rng = np.random.default_rng(0)
    x = rng.standard_normal((2048, 1024)) * 0.05
    wr = rng.standard_normal((2048, 513)) * 0.008
    wi = rng.standard_normal((2048, 513)) * 0.008
    z = ln(x)
    ref = np.fft.irfft2(np.fft.rfft2(z) * (wr + 1j * wi), s=(2048, 1024))
    y = exp_y(exp_F2(exp_F1(x), wr, wi))
    print(np.abs(ref - y).max(), np.abs(ref).max())
    b = gslot_bins()
    canon = np.where(b > 512, 1024 - b, b)
    assert sorted(canon) == list(range(1, 513))
    assert all((H * 9363) >> 16 == H // 7 for H in range(224))
```

```python
import sys, os
sys.path.insert(0, os.path.dirname(os.path.abspath(__file__)))
from asmlib import *
from common import *

NAME = "interleave_layers__spectral_gfnet__dense_activation_gelu__prompt"
ST = " sc1"

A = Asm()
kernels = []

def mfma32(d, x, y, c):
    A(f"v_mfma_f32_16x16x32_bf16 {d}, {x}, {y}, {c}")
def mfma16(d, x, y, c):
    A(f"v_mfma_f32_16x16x16_bf16 {d}, {x}, {y}, {c}")

def entry(name):
    A.raw(f".globl {name}\n.p2align 8\n.type {name},@function\n{name}:")
    A.reset()

def srd(d, base, off, size):
    A(f"s_add_u32 {s(d)}, {s(base)}, {off}")
    A(f"s_addc_u32 {s(d+1)}, {s(base+1)}, 0")
    A(f"s_mov_b32 {s(d+2)}, {size}")
    A(f"s_mov_b32 {s(d+3)}, 0x20000")

def table_ptr(sr, tbl, tag):
    A(f"s_getpc_b64 {s(sr,2)}")
    A.raw(f"Lpc_{tag}:")
    A(f"s_add_u32 {s(sr)}, {s(sr)}, {tbl}-Lpc_{tag}")
    A(f"s_addc_u32 {s(sr+1)}, {s(sr+1)}, 0")

def wave_reduce2(x, y):
    for m in ("quad_perm:[1,0,3,2] row_mask:0xf bank_mask:0xf", "quad_perm:[2,3,0,1] row_mask:0xf bank_mask:0xf",
              "row_half_mirror row_mask:0xf bank_mask:0xf", "row_mirror row_mask:0xf bank_mask:0xf",
              "row_bcast:15 row_mask:0xa bank_mask:0xf", "row_bcast:31 row_mask:0xc bank_mask:0xf"):
        A(f"v_add_f32_dpp {v(x)}, {v(x)}, {v(x)} {m}")
        A(f"v_add_f32_dpp {v(y)}, {v(y)}, {v(y)} {m}")

def cmul_pk(ore, oim, xre, xim, tc, ts, sign):
    for h in (0, 2):
        A(f"v_pk_mul_f32 {v(ore+h,2)}, {v(xre+h,2)}, {v(tc+h,2)}")
        A(f"v_pk_mul_f32 {v(oim+h,2)}, {v(xim+h,2)}, {v(tc+h,2)}")
    neg = " neg_lo:[0,1,0] neg_hi:[0,1,0]"
    for h in (0, 2):
        A(f"v_pk_fma_f32 {v(ore+h,2)}, {v(xim+h,2)}, {v(ts+h,2)}, {v(ore+h,2)}" + (neg if sign > 0 else ""))
        A(f"v_pk_fma_f32 {v(oim+h,2)}, {v(xre+h,2)}, {v(ts+h,2)}, {v(oim+h,2)}" + (neg if sign < 0 else ""))

def gen_k1():
    entry("k1a_kernel")
    A("s_load_dwordx2 s[4:5], s[0:1], 0")
    A("s_load_dwordx2 s[6:7], s[0:1], 80")
    A("s_mov_b32 s20, 0")
    A(f"s_mov_b32 s21, {LOFF(0)+O_F1}")
    A("s_cmp_lt_u32 s2, 256")
    A("s_cbranch_scc1 L_k1_body")
    A("s_cmp_lt_u32 s2, 384")
    A("s_cbranch_scc1 L_wpack")
    A("s_endpgm")
    entry("k1b_kernel")
    A("s_load_dwordx2 s[4:5], s[0:1], 80")
    A("s_load_dwordx2 s[6:7], s[0:1], 80")
    A(f"s_mov_b32 s20, {OFF_X2}")
    A(f"s_mov_b32 s21, {LOFF(1)+O_F1}")
    A("s_cmp_lt_u32 s2, 256")
    A("s_cbranch_scc1 L_k1_body")
    A("s_endpgm")
    snap = A.snapshot()
    A.raw(".p2align 6")
    A.label("L_k1_body")
    LN, VO, L16, WV, VG, VC = 1, 2, 3, 4, 5, 6
    X = 8
    Cc, Ns, Ps, Cd, Nd, Pd, C1, ONE = 16, 20, 24, 28, 32, 36, 40, 44
    TC, TS = 48, 56
    P = 64
    RR, II, Z, CM = 72, 80, 88, 96
    BR, BI = 100, 108
    SUM, SQ, T0, T1, T2, T3 = 116, 117, 118, 119, 120, 121
    MC = 122
    table_ptr(30, "tbl_k1", "k1")
    A(f"v_and_b32 {v(LN)}, 63, v0")
    A(f"v_lshlrev_b32 {v(L16)}, 4, {v(LN)}")
    A(f"v_add_u32 {v(7)}, 4096, {v(L16)}")
    A(f"global_load_dwordx4 {v(Cc,4)}, {v(L16)}, s[30:31]")
    A(f"global_load_dwordx4 {v(Ns,4)}, {v(L16)}, s[30:31] offset:1024")
    A(f"v_lshrrev_b32 {v(WV)}, 6, v0")
    A(f"v_lshrrev_b32 {v(VG)}, 4, {v(LN)}")
    A(f"v_readfirstlane_b32 s22, {v(WV)}")
    A(f"v_and_b32 {v(VC)}, 15, {v(LN)}")
    A(f"v_lshlrev_b32 {v(VO)}, 9, {v(VG)}")
    A(f"v_lshl_add_u32 {v(VO)}, {v(VC)}, 2, {v(VO)}")
    A("s_lshl_b32 s23, s22, 8")
    A("s_add_u32 s23, s23, s2")
    A("s_lshl_b32 s23, s23, 11")
    A("s_waitcnt lgkmcnt(0)")
    srd(8, 4, "s20", 4 * MB)
    for t in range(8):
        A(f"buffer_load_dword {v(X+t)}, {v(VO)}, s[8:11], s23 offen offset:{64*t}")
    A(f"global_load_dwordx4 {v(TC,4)}, {v(L16)}, s[30:31] offset:2048")
    A(f"global_load_dwordx4 {v(TC+4,4)}, {v(L16)}, s[30:31] offset:3072")
    A(f"global_load_dwordx4 {v(TS,4)}, {v(7)}, s[30:31]")
    A(f"global_load_dwordx4 {v(TS+4,4)}, {v(7)}, s[30:31] offset:1024")
    srd(12, 6, "s21", 4 * MB)
    A("s_mov_b32 s24, 0x00010001")
    A("s_mov_b32 s25, 0x00010001")
    A("s_mov_b32 s26, 1")
    A("s_mov_b32 s27, 0")
    A("s_mov_b32 s28, 0x05040100")
    A("s_mov_b32 s29, 0x07060302")
    A(f"v_lshrrev_b32 {v(T0)}, 1, {v(VC)}")
    A(f"v_and_b32 {v(T1)}, 1, {v(VC)}")
    A(f"v_lshlrev_b32 {v(T1)}, 9, {v(T1)}")
    A(f"v_lshlrev_b32 {v(T2)}, 9, {v(VG)}")
    A(f"v_add_u32 {v(T2)}, s2, {v(T2)}")
    A(f"v_mad_u32_u24 {v(T2)}, {v(T0)}, {v(T2)}, {v(T1)}")
    A(f"v_lshl_add_u32 {v(T3)}, {v(T0)}, 8, {v(T2)}")
    A(f"v_and_b32 {v(T2)}, 2047, {v(T2)}")
    A(f"v_and_b32 {v(T3)}, 2047, {v(T3)}")
    A(f"v_cvt_f32_u32 {v(T2)}, {v(T2)}")
    A(f"v_cvt_f32_u32 {v(T3)}, {v(T3)}")
    A(f"v_mul_f32 {v(T2)}, 0x3a000000, {v(T2)}")
    A(f"v_mul_f32 {v(T3)}, 0x3a000000, {v(T3)}")
    A(f"v_cos_f32 {v(MC)}, {v(T2)}")
    A(f"v_sin_f32 {v(MC+1)}, {v(T2)}")
    A(f"v_cos_f32 {v(MC+2)}, {v(T3)}")
    A(f"v_sin_f32 {v(MC+3)}, {v(T3)}")
    for i in range(4):
        A(f"v_mov_b32 {v(ONE+i)}, 0x3f803f80")
    A(f"v_mov_b32 {v(T0)}, 0xbf803f80")
    A.vm_wait_for(R("v", Cc, 8))
    for i in range(4):
        A(f"v_xor_b32 {v(Ps+i)}, 0x80008000, {v(Ns+i)}")
        A(f"v_xor_b32 {v(Cd+i)}, 0x80000000, {v(Cc+i)}")
        A(f"v_xor_b32 {v(Nd+i)}, 0x80000000, {v(Ns+i)}")
        A(f"v_xor_b32 {v(Pd+i)}, 0x00008000, {v(Ns+i)}")
        A(f"v_cndmask_b32 {v(C1+i)}, {v(Cc+i)}, {v(T0)}, s[24:25]")
    LW, LR, GO = 126, 127, 7
    A(f"s_lshl_b32 s32, s22, 11")
    A(f"v_add_u32 {v(LW)}, s32, {v(L16)}")
    A(f"v_lshlrev_b32 {v(LR)}, 12, {v(VG)}")
    A(f"v_lshl_add_u32 {v(LR)}, {v(VC)}, 4, {v(LR)}")
    A(f"s_lshl_b32 s33, s22, 8")
    A(f"v_add_u32 {v(LR)}, s33, {v(LR)}")
    A.vm_wait_for(R("v", X, 8))
    for u in range(4):
        A(f"v_perm_b32 {v(P+u)}, {v(X+2*u+1)}, {v(X+2*u)}, s28")
        A(f"v_perm_b32 {v(P+4+u)}, {v(X+2*u+1)}, {v(X+2*u)}, s29")
    for q in range(2):
        mfma32(v(RR+4*q,4), v(P+4*q,4), v(C1,4), 0)
        mfma32(v(II+4*q,4), v(P+4*q,4), v(Ns,4), 0)
    for t in range(8):
        A(f"v_dot2_f32_bf16 {v(SUM)}, {v(X+t)}, {v(ONE)}, {v(SUM) if t else 0}")
        A(f"v_dot2_f32_bf16 {v(SQ)}, {v(X+t)}, {v(X+t)}, {v(SQ) if t else 0}")
    wave_reduce2(SUM, SQ)
    A(f"v_readlane_b32 s34, {v(SUM)}, 63")
    A(f"v_readlane_b32 s35, {v(SQ)}, 63")
    A.vm_wait_for(R("v", TC, 16))
    A(f"v_lshlrev_b32 {v(GO)}, 20, {v(VG)}")
    A(f"v_lshl_add_u32 {v(GO)}, {v(VC)}, 4, {v(GO)}")
    A(f"v_mov_b32 {v(T0)}, 0xbd000000")
    A(f"v_mul_f32 {v(CM)}, s34, {v(T0)}")
    for i in range(1, 4):
        A(f"v_mov_b32 {v(CM+i)}, {v(CM)}")
    for q in range(2):
        mfma32(v(Z+4*q,4), v(P+4*q,4), v(ONE,4), v(CM,4))
    for q in range(2):
        cmul_pk(BR+4*q, BI+4*q, RR+4*q, II+4*q, TC+4*q, TS+4*q, -1)
    A(f"v_mov_b32 {v(T1)}, 0x3a800000")
    A(f"v_mul_f32 {v(T0)}, s34, {v(T1)}")
    A(f"v_mul_f32 {v(T1)}, s35, {v(T1)}")
    A(f"v_fma_f32 {v(T1)}, -{v(T0)}, {v(T0)}, {v(T1)}")
    A(f"v_max_f32 {v(T1)}, 0, {v(T1)}")
    A(f"v_add_f32 {v(T1)}, 0x3727c5ac, {v(T1)}")
    A(f"v_rsq_f32 {v(T1)}, {v(T1)}")
    PBr, PBi, Qr, Qi = RR, RR+4, II, II+4
    for i in range(4):
        A(f"v_cvt_pk_bf16_f32 {v(PBr+i)}, {v(BR+i)}, {v(BR+4+i)}")
        A(f"v_cvt_pk_bf16_f32 {v(PBi+i)}, {v(BI+i)}, {v(BI+4+i)}")
    A(f"s_lshl_b32 s36, s22, 2")
    A(f"v_mov_b32 {v(T2)}, s36")
    A(f"ds_write_b32 {v(T2)}, {v(T1)} offset:16384")
    O1r, O1i, O0r, O0i, E = BR, BR+4, BI, BI+4, CM
    mfma32(v(O1r,4), v(Cd,4), v(PBr,4), 0)
    mfma32(v(O1i,4), v(Cd,4), v(PBi,4), 0)
    mfma32(v(O1r,4), v(Pd,4), v(PBi,4), v(O1r,4))
    mfma32(v(O1i,4), v(Nd,4), v(PBr,4), v(O1i,4))
    for i in range(4):
        A(f"v_cvt_pk_bf16_f32 {v(Qr+i)}, {v(Z+i)}, {v(Z+4+i)}")
        A(f"v_cndmask_b32 {v(Qr+i)}, {v(PBr+i)}, {v(Qr+i)}, s[24:25]")
        A(f"v_cndmask_b32 {v(Qi+i)}, {v(PBi+i)}, 0, s[24:25]")
    mfma32(v(E,4), v(Cd,4), v(Qr,4), 0)
    mfma32(v(O0r,4), v(Cc,4), v(Qr,4), 0)
    mfma32(v(O0i,4), v(Cc,4), v(Qi,4), 0)
    mfma32(v(O0r,4), v(Ps,4), v(Qi,4), v(O0r,4))
    mfma32(v(O0i,4), v(Ns,4), v(Qr,4), v(O0i,4))
    Wt = Z
    for i in range(4):
        A(f"v_cvt_pk_bf16_f32 {v(Wt+4+i)}, {v(O1r+i)}, {v(O1i+i)}")
    A(f"ds_write_b128 {v(LW)}, {v(Wt+4,4)} offset:1024")
    A(f"v_mul_f32 {v(E)}, 0.5, {v(E)}")
    A(f"v_cndmask_b32 {v(O0r)}, {v(O0r)}, {v(E)}, s[26:27]")
    for i in range(4):
        A(f"v_cvt_pk_bf16_f32 {v(Wt+i)}, {v(O0r+i)}, {v(O0i+i)}")
    A(f"ds_write_b128 {v(LW)}, {v(Wt,4)}")
    A(f"v_lshlrev_b32 {v(T2)}, 3, {v(VG)}")
    A("s_waitcnt lgkmcnt(0)")
    A("s_barrier")
    LA = 64
    A(f"ds_read_b64 {v(T0,2)}, {v(T2)} offset:16384")
    A(f"ds_read_b128 {v(LA,4)}, {v(LR)}")
    A(f"ds_read_b128 {v(LA+4,4)}, {v(LR)} offset:2048")
    A("s_lshl_b32 s37, s2, 12")
    A("s_lshl_b32 s38, s22, 9")
    A("s_add_u32 s37, s37, s38")
    A("s_waitcnt lgkmcnt(2)")
    A(f"v_mul_f32 {v(MC)}, {v(MC)}, {v(T0)}")
    A(f"v_mul_f32 {v(MC+1)}, {v(MC+1)}, {v(T0)}")
    A(f"v_mul_f32 {v(MC+2)}, {v(MC+2)}, {v(T1)}")
    A(f"v_mul_f32 {v(MC+3)}, {v(MC+3)}, {v(T1)}")
    A(f"v_cvt_pk_bf16_f32 {v(T2)}, {v(MC)}, {v(MC+1)}")
    A(f"v_cvt_pk_bf16_f32 {v(T3)}, {v(MC+2)}, {v(MC+3)}")
    A("s_waitcnt lgkmcnt(0)")
    A(f"v_swap_b32 {v(LA+1)}, {v(LA+4)}")
    A(f"v_swap_b32 {v(LA+3)}, {v(LA+6)}")
    D = 72
    pairs = [LA, LA+4, LA+2, LA+6]
    for t in range(4):
        mfma16(v(D+4*t,4), v(T2,2), v(pairs[t],2), 0)
    OUT = 100
    for t in range(4):
        A(f"v_cvt_pk_bf16_f32 {v(OUT+2*t)}, {v(D+4*t)}, {v(D+4*t+1)}")
        A(f"v_cvt_pk_bf16_f32 {v(OUT+2*t+1)}, {v(D+4*t+2)}, {v(D+4*t+3)}")
        if t & 1:
            A(f"buffer_store_dwordx4 {v(OUT+2*t-2,4)}, {v(GO)}, s[12:15], s37 offen offset:{256*(t>>1)}{ST}")
    A("s_endpgm")

    A.reset()
    A.raw(".p2align 6")
    A.label("L_wpack")
    A("s_load_dwordx4 s[16:19], s[0:1], 8")
    A("s_sub_u32 s3, s2, 256")
    A("s_and_b32 s40, s3, 7")
    A("s_lshr_b32 s41, s3, 3")
    A(f"v_and_b32 {v(LN)}, 63, v0")
    A(f"v_lshrrev_b32 {v(WV)}, 6, v0")
    A(f"v_lshrrev_b32 {v(VC)}, 2, {v(LN)}")
    A(f"v_readfirstlane_b32 s22, {v(WV)}")
    A(f"v_and_b32 {v(VG)}, 3, {v(LN)}")
    A("s_lshr_b32 s42, s41, 2")
    A("s_lshl_b32 s42, s42, 6")
    A("s_and_b32 s43, s41, 3")
    A("s_lshl_b32 s43, s43, 2")
    A("s_add_u32 s42, s42, s43")
    A("s_lshl_b32 s42, s42, 3")
    A("s_add_u32 s42, s42, s40")
    A(f"v_lshl_add_u32 {v(8)}, {v(VG)}, 3, s42")
    A("s_cmp_ge_u32 s22, 4")
    A("s_cselect_b32 s44, -1, 1")
    A("s_cselect_b32 s45, 0x80000000, 0")
    A("s_cselect_b32 s46, 3, 0")
    A("s_lshl_b32 s47, s22, 7")
    A("s_sub_u32 s48, 928, s47")
    A("s_cmp_ge_u32 s22, 4")
    A("s_cselect_b32 s47, s48, s47")
    A("s_cselect_b32 s48, 16, 0")
    A(f"v_mov_b32 {v(9)}, s48")
    A(f"v_cmp_eq_u32 vcc, 0, {v(VC)}")
    A(f"v_cndmask_b32 {v(9)}, {v(VC)}, {v(9)}, vcc")
    A(f"v_mul_i32_i24 {v(9)}, s44, {v(9)}")
    A(f"v_add_u32 {v(9)}, s47, {v(9)}")
    A(f"v_lshlrev_b32 {v(9)}, 1, {v(9)}")
    A("s_cmp_eq_u32 s22, 0")
    A("s_cselect_b32 s49, 1024, 0")
    A(f"v_mov_b32 {v(10)}, s49")
    A(f"v_cndmask_b32 {v(10)}, 0, {v(10)}, vcc")
    A("s_mov_b32 s50, 1026")
    for i in range(4):
        A(f"v_add_u32 {v(12+i)}, {128*i}, {v(8)}")
        A(f"v_mul_i32_i24 {v(12+i)}, s44, {v(12+i)}")
        A(f"v_and_b32 {v(12+i)}, 2047, {v(12+i)}")
        A(f"v_mad_u32_u24 {v(12+i)}, {v(12+i)}, s50, {v(9)}")
        A(f"v_add_u32 {v(16+i)}, {v(12+i)}, {v(10)}")
    A("s_waitcnt lgkmcnt(0)")
    srd(8, 16, 0, 2048 * 1026)
    srd(52, 18, 0, 2048 * 1026)
    srd(12, 6, OFF_WP, 4 * MB)
    WRr, WIr = 24, 40
    for t in range(4):
        for i in range(4):
            vo = (16 if t == 0 else 12) + i
            A(f"buffer_load_ushort {v(WRr+4*t+i)}, {v(vo)}, s[8:11], 0 offen offset:{64*t}")
            A(f"buffer_load_ushort {v(WIr+4*t+i)}, {v(vo)}, s[52:55], 0 offen offset:{64*t}")
    A(f"v_lshlrev_b32 {v(20)}, 12, {v(VC)}")
    A(f"v_lshl_add_u32 {v(20)}, {v(VG)}, 4, {v(20)}")
    A("s_lshr_b32 s56, s40, 1")
    A("s_lshl_b32 s56, s56, 20")
    A("s_and_b32 s57, s40, 1")
    A("s_lshl_b32 s57, s57, 10")
    A("s_add_u32 s56, s56, s57")
    A("s_lshl_b32 s57, s41, 6")
    A("s_add_u32 s56, s56, s57")
    A("s_lshl_b32 s57, s22, 17")
    A("s_add_u32 s56, s56, s57")
    for t in range(4):
        A(f"s_xor_b32 s57, s46, {t}")
        A("s_lshr_b32 s58, s57, 1")
        A("s_lshl_b32 s58, s58, 16")
        A("s_and_b32 s57, s57, 1")
        A("s_lshl_b32 s57, s57, 11")
        A("s_add_u32 s57, s57, s58")
        A(f"s_add_u32 {s(60+t)}, s56, s57")
    for t in range(4):
        A.vm_wait_for(R("v", WRr+4*t, 4) + R("v", WIr+4*t, 4))
        for i in range(4):
            A(f"v_lshl_or_b32 {v(WRr+4*t+i)}, {v(WIr+4*t+i)}, 16, {v(WRr+4*t+i)}")
            A(f"v_xor_b32 {v(WRr+4*t+i)}, s45, {v(WRr+4*t+i)}")
        A(f"buffer_store_dwordx4 {v(WRr+4*t,4)}, {v(20)}, s[12:15], {s(60+t)} offen{ST}")
    A("s_endpgm")
    kernels.append(("k1a_kernel", 128, 0, 72))
    kernels.append(("k1b_kernel", 128, 0, 72))

def gen_gpack(which):
    A.reset()
    A.raw(".p2align 6")
    A.label(f"L_gpack{which}")
    pitch = 7168 if which == 1 else 2048
    A(f"s_load_dwordx2 s[16:17], s[0:1], {32 if which == 1 else 48}")
    A("s_sub_u32 s3, s2, 256")
    if which == 1:
        A("s_and_b32 s40, s3, 15")
        A("s_lshr_b32 s41, s3, 4")
    else:
        A("s_lshr_b32 s40, s3, 2")
        A("s_and_b32 s41, s3, 3")
    A("v_and_b32 v1, 63, v0")
    A("v_lshrrev_b32 v4, 6, v0")
    A("v_lshrrev_b32 v5, 5, v1")
    A("v_readfirstlane_b32 s22, v4")
    A("v_and_b32 v6, 31, v1")
    A("v_lshlrev_b32 v7, 2, v5")
    A("v_xor_b32 v7, v7, v6")
    A("v_xor_b32 v8, 8, v7")
    A(f"v_mul_u32_u24 v5, {pitch}, v5")
    A("v_lshl_add_u32 v7, v7, 4, v5")
    A("v_lshl_add_u32 v8, v8, 4, v5")
    A("s_lshl_b32 s42, s40, 6")
    A("s_lshl_b32 s43, s22, 3")
    A("s_add_u32 s42, s42, s43")
    A(f"s_mul_i32 s42, s42, {pitch}")
    A("s_lshl_b32 s43, s41, 9")
    A("s_add_u32 s42, s42, s43")
    A("s_lshl_b32 s44, s22, 12")
    A("s_waitcnt lgkmcnt(0)")
    srd(8, 16, 0, 1024 * 3584 * 2)
    srd(12, 6, OFF_W1P if which == 1 else OFF_W2P, 1024 * 3584 * 2)
    for n in range(4):
        A(f"s_add_u32 m0, s44, {1024*n}")
        A(f"s_add_u32 s45, s42, {2*n*pitch}")
        A(f"buffer_load_dwordx4 v{7 + (n & 1)}, s[8:11], s45 offen lds")
    A("v_lshrrev_b32 v9, 4, v1")
    A("v_bfe_u32 v10, v1, 2, 2")
    A("v_and_b32 v11, 3, v1")
    A("v_lshl_add_u32 v9, v9, 3, v10")
    A("v_lshlrev_b32 v9, 9, v9")
    A("v_lshl_add_u32 v9, v11, 4, v9")
    A("s_lshr_b32 s46, s22, 2")
    A("s_lshl_b32 s47, s46, 14")
    A("v_add_u32 v9, s47, v9")
    A("s_and_b32 s48, s22, 3")
    A("s_lshl_b32 s48, s48, 1")
    A("v_xor_b32 v12, s48, v10")
    A("v_xor_b32 v13, 1, v12")
    A("v_lshl_add_u32 v12, v12, 6, v9")
    A("v_lshl_add_u32 v13, v13, 6, v9")
    A("v_lshlrev_b32 v14, 4, v1")
    A("s_lshl_b32 s49, s40, 1")
    A("s_add_u32 s49, s49, s46")
    A("s_lshl_b32 s50, s41, 3")
    A("s_add_u32 s50, s50, s48")
    for x in range(2):
        for t in range(2):
            d = 60 + 2 * x + t
            if which == 1:
                A(f"s_lshl_b32 s51, s50, 1")
                A(f"s_add_u32 s51, s51, {2*x+t}")
                A("s_mul_i32 s52, s51, 9363")
                A("s_lshr_b32 s52, s52, 16")
                A("s_mul_i32 s53, s52, 7")
                A("s_sub_u32 s53, s51, s53")
                A("s_sub_u32 s54, s53, 1")
                A("s_cmp_eq_u32 s53, 0")
                A("s_cselect_b32 s54, 6, s54")
                A("s_bitcmp1_b32 s52, 0")
                A("s_cselect_b32 s53, s54, s53")
                A("s_lshl_b32 s52, s52, 5")
                A("s_add_u32 s52, s52, s49")
                A("s_mul_i32 s52, s52, 7")
                A("s_add_u32 s52, s52, s53")
                A(f"s_lshl_b32 s{d}, s52, 10")
            else:
                A("s_lshr_b32 s52, s50, 1")
                A("s_mul_i32 s52, s52, 112")
                A("s_add_u32 s52, s52, s49")
                A("s_lshl_b32 s52, s52, 12")
                A(f"s_add_u32 s{d}, s52, {(2*x+t)*1024}")
    A("s_waitcnt vmcnt(0)")
    A("s_barrier")
    for x in range(2):
        for t in range(2):
            d = 16 + 4 * (2 * x + t)
            A(f"ds_read_b64_tr_b16 {v(d,2)}, v{12+x} offset:{8*t}")
            A(f"ds_read_b64_tr_b16 {v(d+2,2)}, v{12+x} offset:{8*t+2048}")
    for n in range(4):
        A.lg_wait_for(R("v", 16 + 4 * n, 4))
        A(f"buffer_store_dwordx4 {v(16+4*n,4)}, v14, s[12:15], s{60+n} offen{ST}")
    A("s_endpgm")

def gen_k2():
    for l, nm in enumerate(("k2a_kernel", "k2b_kernel")):
        entry(nm)
        A("s_load_dwordx2 s[6:7], s[0:1], 80")
        A(f"s_mov_b32 s20, {LOFF(l)+O_F1}")
        A(f"s_mov_b32 s21, {LOFF(l)+O_F2}")
        A("s_cmp_lt_u32 s2, 256")
        A("s_cbranch_scc1 L_k2_body")
        if l == 0:
            A("s_cmp_lt_u32 s2, 480")
            A("s_cbranch_scc1 L_gpack1")
        A("s_endpgm")
    A.raw(".p2align 6")
    A.label("L_k2_body")
    LN, L16, WV, VG, VC, GA, LA = 1, 2, 3, 4, 5, 6, 7
    Dre, Dim, TC, TS = 8, 12, 16, 20
    WW = 24
    WR, WI = 32, 40
    Q = 48
    Dr, Di = 56, 64
    Br, Bi = 72, 80
    T0, T1 = 88, 89
    table_ptr(30, "tbl_k2", "k2")
    A(f"v_and_b32 {v(LN)}, 63, v0")
    A(f"v_lshlrev_b32 {v(L16)}, 4, {v(LN)}")
    for n, d in enumerate((Dre, Dim, TC, TS)):
        A(f"global_load_dwordx4 {v(d,4)}, {v(L16)}, s[30:31] offset:{1024*n}")
    A(f"v_lshrrev_b32 {v(WV)}, 6, v0")
    A(f"v_lshrrev_b32 {v(VG)}, 4, {v(LN)}")
    A(f"v_readfirstlane_b32 s22, {v(WV)}")
    A(f"v_and_b32 {v(VC)}, 15, {v(LN)}")
    A("s_and_b32 s40, s2, 7")
    A("s_lshr_b32 s41, s2, 3")
    A("s_lshl_b32 s40, s40, 5")
    A("s_add_u32 s40, s40, s41")
    A("s_lshr_b32 s41, s40, 6")
    A("s_and_b32 s42, s40, 63")
    A(f"v_lshrrev_b32 {v(T0)}, 2, {v(LN)}")
    A(f"v_and_b32 {v(T1)}, 3, {v(LN)}")
    A(f"v_xor_b32 {v(T1)}, {v(T1)}, {v(VG)}")
    A(f"v_lshlrev_b32 {v(GA)}, 12, {v(T0)}")
    A(f"v_lshl_add_u32 {v(GA)}, {v(T1)}, 4, {v(GA)}")
    A("s_lshl_b32 s43, s41, 20")
    A("s_lshl_b32 s44, s42, 6")
    A("s_add_u32 s43, s43, s44")
    A("s_lshl_b32 s44, s22, 17")
    A("s_add_u32 s43, s43, s44")
    A("s_add_u32 s44, s43, 65536")
    A("s_lshl_b32 s45, s22, 11")
    A("s_lshl_b32 s46, s40, 3")
    A("s_add_u32 s46, s46, s22")
    A("s_lshl_b32 s46, s46, 11")
    A("s_waitcnt lgkmcnt(0)")
    srd(8, 6, "s20", 4 * MB)
    A("s_mov_b32 m0, s45")
    A(f"buffer_load_dwordx4 {v(GA)}, s[8:11], s43 offen lds")
    A("s_add_u32 m0, s45, 1024")
    A(f"buffer_load_dwordx4 {v(GA)}, s[8:11], s44 offen lds")
    srd(16, 6, OFF_WP, 4 * MB)
    A(f"buffer_load_dwordx4 {v(WW,4)}, {v(L16)}, s[16:19], s46 offen")
    A(f"buffer_load_dwordx4 {v(WW+4,4)}, {v(L16)}, s[16:19], s46 offen offset:1024")
    srd(12, 6, "s21", 4 * MB)
    A("s_lshr_b32 s47, s22, 1")
    A(f"v_lshrrev_b32 {v(T0)}, 2, {v(VC)}")
    A(f"v_xor_b32 {v(T0)}, s47, {v(T0)}")
    A(f"v_lshlrev_b32 {v(LA)}, 12, {v(VG)}")
    A(f"v_lshl_add_u32 {v(LA)}, {v(VC)}, 6, {v(LA)}")
    A(f"v_lshl_add_u32 {v(LA)}, {v(T0)}, 4, {v(LA)}")
    A("s_and_b32 s47, s22, 1")
    A("s_lshl_b32 s47, s47, 3")
    A(f"v_add_u32 {v(LA)}, s47, {v(LA)}")
    A(f"v_add_u32 {v(T1)}, s45, {v(L16)}")
    A("s_waitcnt vmcnt(2)")
    A("s_barrier")
    for n, i in enumerate((0, 2, 1, 3)):
        A(f"ds_read_b64 {v(Q+2*n,2)}, {v(LA)} offset:{1024*i}")
    A("s_waitcnt vmcnt(0)")
    for i in range(8):
        A(f"v_lshlrev_b32 {v(WR+i)}, 16, {v(WW+i)}")
        A(f"v_and_b32 {v(WI+i)}, 0xffff0000, {v(WW+i)}")
    A("s_waitcnt lgkmcnt(0)")
    A(f"v_swap_b32 {v(Q+1)}, {v(Q+4)}")
    A(f"v_swap_b32 {v(Q+3)}, {v(Q+6)}")

    def fft256():
        for c in range(2):
            mfma32(v(Dr+4*c,4), v(Q+4*c,4), v(Dre,4), 0)
            mfma32(v(Di+4*c,4), v(Q+4*c,4), v(Dim,4), 0)
        for c in range(2):
            cmul_pk(Br+4*c, Bi+4*c, Dr+4*c, Di+4*c, TC, TS, -1)
            for i in range(4):
                A(f"v_cvt_pk_bf16_f32 {v(Q+4*c+i)}, {v(Br+4*c+i)}, {v(Bi+4*c+i)}")
            mfma32(v(Dr+4*c,4), v(Dre,4), v(Q+4*c,4), 0)
            mfma32(v(Di+4*c,4), v(Dim,4), v(Q+4*c,4), 0)
    fft256()
    for c in range(2):
        cmul_pk(Br+4*c, Bi+4*c, Dr+4*c, Di+4*c, WR+4*c, WI+4*c, +1)
        for i in range(4):
            A(f"v_cvt_pk_bf16_f32 {v(Q+4*c+i)}, {v(Bi+4*c+i)}, {v(Br+4*c+i)}")
    fft256()
    for i in range(4):
        for c in range(2):
            A(f"v_cvt_pk_bf16_f32 {v(Q+2*i+c)}, {v(Di+4*c+i)}, {v(Dr+4*c+i)}")
        A(f"ds_write_b64 {v(LA)}, {v(Q+2*i,2)} offset:{1024*i}")
    A("s_waitcnt lgkmcnt(0)")
    A("s_barrier")
    A(f"ds_read_b128 {v(Br,4)}, {v(T1)}")
    A(f"ds_read_b128 {v(Br+4,4)}, {v(T1)} offset:1024")
    A("s_waitcnt lgkmcnt(1)")
    A(f"buffer_store_dwordx4 {v(Br,4)}, {v(GA)}, s[12:15], s43 offen{ST}")
    A("s_waitcnt lgkmcnt(0)")
    A(f"buffer_store_dwordx4 {v(Br+4,4)}, {v(GA)}, s[12:15], s44 offen{ST}")
    A("s_endpgm")
    gen_gpack(1)
    kernels.append(("k2a_kernel", 96, 0, 72))
    kernels.append(("k2b_kernel", 96, 0, 72))

def gen_k3():
    for l, nm in enumerate(("k3a_kernel", "k3b_kernel")):
        entry(nm)
        A(f"s_load_dwordx2 s[4:5], s[0:1], {0 if l == 0 else 80}")
        A("s_load_dwordx2 s[6:7], s[0:1], 80")
        A(f"s_mov_b32 s20, {0 if l == 0 else OFF_X2}")
        A(f"s_mov_b32 s21, {LOFF(l)}")
        A("s_cmp_lt_u32 s2, 256")
        A("s_cbranch_scc1 L_k3_body")
        if l == 0:
            A("s_cmp_lt_u32 s2, 480")
            A("s_cbranch_scc1 L_gpack2")
        A("s_endpgm")
    A.raw(".p2align 6")
    A.label("L_k3_body")
    LN, L16, WV, VG, VC, GO, T4 = 1, 2, 3, 4, 5, 6, 7
    GC = 8
    HH = 24
    TC, TS = 32, 40
    IN = 48
    XR = 56
    Y = 64
    D = 80
    P0, P1, P0m, P1n = 96, 100, 104, 108
    E = 112
    T0, T1, T2, T3 = 120, 121, 122, 123
    LW, LR, XO, ZO = 124, 125, 126, 127
    table_ptr(30, "tbl_k3", "k3")
    A(f"v_and_b32 {v(LN)}, 63, v0")
    A(f"v_lshlrev_b32 {v(L16)}, 4, {v(LN)}")
    A(f"v_lshrrev_b32 {v(WV)}, 6, v0")
    A(f"v_lshrrev_b32 {v(VG)}, 4, {v(LN)}")
    A(f"v_readfirstlane_b32 s22, {v(WV)}")
    A(f"v_and_b32 {v(VC)}, 15, {v(LN)}")
    A(f"v_lshlrev_b32 {v(GO)}, 20, {v(VG)}")
    A(f"v_lshl_add_u32 {v(GO)}, {v(VC)}, 4, {v(GO)}")
    A(f"v_lshlrev_b32 {v(XO)}, 6, {v(VC)}")
    A(f"v_lshl_add_u32 {v(XO)}, {v(VG)}, 4, {v(XO)}")
    A("s_lshl_b32 s37, s2, 12")
    A("s_lshl_b32 s38, s22, 9")
    A("s_add_u32 s37, s37, s38")
    A("s_lshl_b32 s23, s22, 8")
    A("s_add_u32 s23, s23, s2")
    A("s_lshl_b32 s39, s23, 11")
    A(f"s_add_u32 s40, s21, {O_F2}")
    A("s_waitcnt lgkmcnt(0)")
    srd(8, 6, "s40", 4 * MB)
    A(f"buffer_load_dwordx4 {v(IN,4)}, {v(GO)}, s[8:11], s37 offen")
    A(f"buffer_load_dwordx4 {v(IN+4,4)}, {v(GO)}, s[8:11], s37 offen offset:256")
    srd(16, 4, "s20", 4 * MB)
    A(f"buffer_load_dwordx4 {v(XR,4)}, {v(XO)}, s[16:19], s39 offen")
    A(f"buffer_load_dwordx4 {v(XR+4,4)}, {v(XO)}, s[16:19], s39 offen offset:1024")
    A(f"v_add_u32 {v(T0)}, 4096, {v(L16)}")
    A(f"v_add_u32 {v(T1)}, 8192, {v(L16)}")
    for n in range(10):
        A(f"global_load_dwordx4 {v(GC+4*n,4)}, {v((L16,T0,T1)[n>>2])}, s[30:31] offset:{1024*(n&3)}")
    A(f"s_add_u32 s40, s21, {O_X1}")
    srd(12, 6, "s40", 8 * MB)
    A("s_mov_b32 s24, 0x00010001")
    A("s_mov_b32 s25, 0x00010001")
    A("s_mov_b32 s26, 0xffff")
    A("s_mov_b32 s27, 0")
    A(f"v_lshrrev_b32 {v(T2)}, 1, {v(VC)}")
    A(f"v_lshlrev_b32 {v(T2)}, 8, {v(T2)}")
    A(f"v_add_u32 {v(T2)}, s2, {v(T2)}")
    A(f"v_and_b32 {v(T3)}, 1, {v(VC)}")
    A(f"v_mul_u32_u24 {v(T3)}, 1536, {v(T3)}")
    A(f"v_lshlrev_b32 {v(T4)}, 1, {v(VG)}")
    A(f"v_mad_u32_u24 {v(T3)}, {v(T4)}, {v(T2)}, {v(T3)}")
    A(f"v_add_u32 {v(T2)}, {v(T3)}, {v(T2)}")
    A(f"v_and_b32 {v(T3)}, 2047, {v(T3)}")
    A(f"v_and_b32 {v(T2)}, 2047, {v(T2)}")
    A(f"v_cvt_f32_u32 {v(T3)}, {v(T3)}")
    A(f"v_cvt_f32_u32 {v(T2)}, {v(T2)}")
    A(f"v_mul_f32 {v(T3)}, 0x3a000000, {v(T3)}")
    A(f"v_mul_f32 {v(T2)}, 0x3a000000, {v(T2)}")
    A(f"v_cos_f32 {v(E)}, {v(T3)}")
    A(f"v_sin_f32 {v(E+1)}, {v(T3)}")
    A(f"v_cos_f32 {v(E+2)}, {v(T2)}")
    A(f"v_sin_f32 {v(E+3)}, {v(T2)}")
    A(f"v_mul_f32 {v(E)}, 0x35800000, {v(E)}")
    A(f"v_mul_f32 {v(E+1)}, 0xb5800000, {v(E+1)}")
    A(f"v_mul_f32 {v(E+2)}, 0x35800000, {v(E+2)}")
    A(f"v_mul_f32 {v(E+3)}, 0xb5800000, {v(E+3)}")
    A(f"v_cvt_pk_bf16_f32 {v(T2)}, {v(E)}, {v(E+1)}")
    A(f"v_cvt_pk_bf16_f32 {v(T3)}, {v(E+2)}, {v(E+3)}")
    A(f"v_lshlrev_b32 {v(LW)}, 12, {v(VG)}")
    A(f"v_lshl_add_u32 {v(LW)}, {v(VC)}, 4, {v(LW)}")
    A("s_lshl_b32 s33, s22, 8")
    A(f"v_add_u32 {v(LW)}, s33, {v(LW)}")
    A("s_lshl_b32 s32, s22, 11")
    A(f"v_add_u32 {v(LR)}, s32, {v(L16)}")
    A(f"v_lshrrev_b32 {v(ZO)}, 1, {v(VC)}")
    A(f"v_lshlrev_b32 {v(ZO)}, 11, {v(ZO)}")
    A(f"v_and_b32 {v(T4)}, 1, {v(VC)}")
    A(f"v_lshl_add_u32 {v(ZO)}, {v(T4)}, 6, {v(ZO)}")
    A(f"v_lshl_add_u32 {v(ZO)}, {v(VG)}, 4, {v(ZO)}")
    A("s_lshr_b32 s41, s23, 4")
    A("s_lshl_b32 s41, s41, 15")
    A("s_and_b32 s42, s23, 15")
    A("s_lshl_b32 s42, s42, 7")
    A("s_add_u32 s41, s41, s42")
    A(f"s_add_u32 s41, s41, {4*MB}")
    A("s_add_u32 s42, s41, 16384")
    A(f"v_mov_b32 {v(T4)}, 0x8000")
    A(f"v_cmp_eq_u32 vcc, 0, {v(LN)}")
    A(f"v_cndmask_b32 {v(T4)}, 0, {v(T4)}, vcc")
    A.vm_wait_for(R("v", IN, 4))
    for t in range(4):
        if t == 2: A.vm_wait_for(R("v", IN+4, 4))
        mfma16(v(D+4*t,4), v(T2,2), v(IN+2*t,2), 0)
    for t in range(4):
        A(f"v_cvt_pk_bf16_f32 {v(P0+t)}, {v(D+4*t)}, {v(D+4*t+1)}")
        A(f"v_cvt_pk_bf16_f32 {v(P1+t)}, {v(D+4*t+2)}, {v(D+4*t+3)}")
    A(f"ds_write_b128 {v(LW)}, {v(P0,4)}")
    A(f"ds_write_b128 {v(LW)}, {v(P1,4)} offset:2048")
    A.vm_wait_for(R("v", XR, 8))
    for at in range(2):
        for i in range(4):
            A(f"v_lshlrev_b32 {v(Y+4*at+i)}, 16, {v(XR+4*at+i)}")
            A(f"v_and_b32 {v(Y+8+4*at+i)}, 0xffff0000, {v(XR+4*at+i)}")
    A("s_waitcnt lgkmcnt(0)")
    A("s_barrier")
    A(f"ds_read_b128 {v(P1,4)}, {v(LR)} offset:1024")
    A(f"ds_read_b128 {v(P0,4)}, {v(LR)}")
    A("s_waitcnt vmcnt(0) lgkmcnt(1)")
    mfma32(v(D,4), v(P1,4), v(GC,4), 0)
    mfma32(v(D+4,4), v(P1,4), v(GC+4,4), 0)
    for i in range(4):
        A(f"v_xor_b32 {v(P1n+i)}, 0x80008000, {v(P1+i)}")
    A("s_waitcnt lgkmcnt(0)")
    for i in range(4):
        A(f"v_cndmask_b32 {v(P0m+i)}, {v(P0+i)}, 0, s[24:25]")
    mfma32(v(E,4), v(P0,4), v(GC,4), 0)
    mfma32(v(D,4), v(P0m,4), v(GC,4), v(D,4))
    mfma32(v(D+4,4), v(P0m,4), v(GC+4,4), v(D+4,4))
    A(f"v_xor_b32 {v(P0)}, {v(P0)}, {v(T4)}")
    mfma32(v(D+8,4), v(P1n,4), v(GC+8,4), 0)
    mfma32(v(D+12,4), v(P1n,4), v(GC+12,4), 0)
    mfma32(v(D+8,4), v(P0m,4), v(GC+8,4), v(D+8,4))
    mfma32(v(D+12,4), v(P0m,4), v(GC+12,4), v(D+12,4))
    mfma32(v(E+4,4), v(P0,4), v(GC+8,4), 0)
    AR, AI = 48, 52
    PA = (56, 60)
    for q in range(2):
        cmul_pk(AR, AI, D+8*q, D+8*q+4, TC+4*q, TS+4*q, +1)
        A(f"v_cndmask_b32 {v(AI)}, {v(AI)}, {v(E+4*q)}, s[26:27]")
        for i in range(4):
            A(f"v_cvt_pk_bf16_f32 {v(PA[q]+i)}, {v(AR+i)}, {v(AI+i)}")
        for at in range(2):
            mfma32(v(Y+8*q+4*at,4), v(PA[q],4), v(HH+4*at,4), v(Y+8*q+4*at,4))
    XP = D
    for at in range(2):
        for i in range(4):
            A(f"v_cvt_pk_bf16_f32 {v(XP+4*at+i)}, {v(Y+4*at+i)}, {v(Y+8+4*at+i)}")
        A(f"buffer_store_dwordx4 {v(XP+4*at,4)}, {v(XO)}, s[12:15], s39 offen offset:{1024*at}{ST}")
    S2, Q2 = 96, 98
    A(f"v_pk_add_f32 {v(S2,2)}, {v(Y,2)}, {v(Y+2,2)}")
    A(f"v_pk_mul_f32 {v(Q2,2)}, {v(Y,2)}, {v(Y,2)}")
    for h in range(2, 16, 2):
        if h > 2:
            A(f"v_pk_add_f32 {v(S2,2)}, {v(S2,2)}, {v(Y+h,2)}")
        A(f"v_pk_fma_f32 {v(Q2,2)}, {v(Y+h,2)}, {v(Y+h,2)}, {v(Q2,2)}")
    A(f"v_add_f32 {v(S2)}, {v(S2)}, {v(S2+1)}")
    A(f"v_add_f32 {v(Q2)}, {v(Q2)}, {v(Q2+1)}")
    wave_reduce2(S2, Q2)
    A(f"v_readlane_b32 s34, {v(S2)}, 63")
    A(f"v_readlane_b32 s35, {v(Q2)}, 63")
    A(f"v_mov_b32 {v(T1)}, 0x3a800000")
    A(f"v_mul_f32 {v(T0)}, s34, {v(T1)}")
    A(f"v_mul_f32 {v(T1)}, s35, {v(T1)}")
    A(f"v_fma_f32 {v(T1)}, -{v(T0)}, {v(T0)}, {v(T1)}")
    A(f"v_max_f32 {v(T1)}, 0, {v(T1)}")
    A(f"v_add_f32 {v(T1)}, 0x3727c5ac, {v(T1)}")
    A(f"v_rsq_f32 {v(T2)}, {v(T1)}")
    A(f"v_mul_f32 {v(T0)}, -{v(T0)}, {v(T2)}")
    for h in range(0, 16, 2):
        A(f"v_pk_fma_f32 {v(Y+h,2)}, {v(Y+h,2)}, {v(T2,2)}, {v(T0,2)} op_sel_hi:[1,0,0]")
    ZP = D + 8
    for at in range(2):
        for i in range(4):
            A(f"v_cvt_pk_bf16_f32 {v(ZP+4*at+i)}, {v(Y+4*at+i)}, {v(Y+8+4*at+i)}")
        A(f"buffer_store_dwordx4 {v(ZP+4*at,4)}, {v(ZO)}, s[12:15], {s(41+at)} offen{ST}")
    A("s_endpgm")
    gen_gpack(2)
    kernels.append(("k3a_kernel", 128, 0, 72))
    kernels.append(("k3b_kernel", 128, 0, 72))

def gen_g1():
    for l, nm in enumerate(("g1a_kernel", "g1b_kernel")):
        entry(nm)
        A("s_load_dwordx2 s[4:5], s[0:1], 40")
        A("s_load_dwordx2 s[6:7], s[0:1], 80")
        A(f"s_mov_b32 s21, {LOFF(l)}")
        A("s_cmp_lt_u32 s2, 256")
        A("s_cbranch_scc1 L_g1_body")
        A("s_endpgm")
    A.raw(".p2align 6")
    A.label("L_g1_body")
    LN, L16, WV, VG, VC, AO, BO = 1, 2, 3, 4, 5, 6, 7
    ACC = 16
    WF = 128
    TMP = 184
    DA = 8
    RA = DA + 1
    NSLOT = 4
    SLOT = 28672
    def acc(ft, tt): return ACC + (ft * 4 + tt) * 4
    A(f"v_and_b32 {v(LN)}, 63, v0")
    A(f"v_lshlrev_b32 {v(L16)}, 4, {v(LN)}")
    A(f"v_lshrrev_b32 {v(WV)}, 6, v0")
    A(f"v_lshrrev_b32 {v(VG)}, 4, {v(LN)}")
    A(f"v_readfirstlane_b32 s22, {v(WV)}")
    A(f"v_and_b32 {v(VC)}, 15, {v(LN)}")
    A(f"v_lshlrev_b32 {v(AO)}, 7, {v(VC)}")
    A(f"v_lshl_add_u32 {v(AO)}, {v(VG)}, 4, {v(AO)}")
    for t in range(1, 4):
        A(f"v_add_u32 {v(8+t)}, {32768*t}, {v(AO)}")
    AOT = [AO, 9, 10, 11]
    A(f"v_lshlrev_b32 {v(BO)}, 4, {v(VG)}")
    A("s_and_b32 s40, s2, 1")
    A("s_lshl_b32 s40, s40, 2")
    A("s_bfe_u32 s41, s2, 0x20003")
    A("s_add_u32 s40, s40, s41")
    A("s_bfe_u32 s41, s2, 0x20001")
    A("s_lshl_b32 s41, s41, 3")
    A("s_lshr_b32 s42, s2, 5")
    A("s_add_u32 s41, s41, s42")
    A("s_lshl_b32 s43, s40, 2")
    A("s_add_u32 s43, s43, s22")
    A("s_lshl_b32 s44, s43, 17")
    A("s_add_u32 s44, s44, s21")
    A(f"s_add_u32 s44, s44, {O_ZN}")
    A("s_mul_i32 s45, s41, 229376")
    A("s_mul_i32 s46, s22, 7168")
    A("s_add_u32 s45, s45, s46")
    A(f"s_add_u32 s45, s45, {OFF_W1P}")
    A("s_lshr_b32 s47, s41, 1")
    A("s_mul_i32 s47, s47, 7")
    A("s_and_b32 s48, s41, 1")
    A("s_lshl_b32 s49, s48, 2")
    A("s_add_u32 s49, s49, s47")
    A("s_add_u32 s47, s47, 3")
    A("s_lshl_b32 s50, s49, 6")
    A("s_lshl_b32 s51, s47, 6")
    A("s_lshl_b32 s52, s48, 3")
    A("s_add_u32 s51, s51, s52")
    A("s_waitcnt lgkmcnt(0)")
    srd(8, 6, "s44", 131072)
    srd(12, 6, "s45", 229376)
    def dma_instrs(stage):
        slot = stage % NSLOT
        out = [f"s_add_u32 m0, s46, {slot*SLOT}", f"s_mov_b32 s54, {stage*SLOT}"]
        for n in range(4):
            out.append(f"buffer_load_dwordx4 {v(L16)}, s[12:15], s54 offen offset:{1024*n} lds")
        out += [f"s_add_u32 m0, s46, {slot*SLOT+4096}", f"s_mov_b32 s54, {stage*SLOT+4096}"]
        for n in range(3):
            out.append(f"buffer_load_dwordx4 {v(L16)}, s[12:15], s54 offen offset:{1024*n} lds")
        out[-1] += f" ;mark{stage}"
        return out
    def put(ins):
        A(ins)
        if ";mark" in ins: G1_mark(int(ins.split(";mark")[1]))
    def dma(stage):
        for ins in dma_instrs(stage): put(ins)
    def aload_instrs(k):
        r = (k % RA) * 16
        so = (k >> 1) * 2048
        out = []
        if k % 2 == 0:
            out.append(f"s_mov_b32 s55, {so}")
        for t in range(4):
            out.append(f"buffer_load_dwordx4 {a(r+4*t,4)}, {v(AOT[t])}, s[8:11], s55 offen offset:{64*(k&1)}")
        return out
    dma(0)
    for k in range(4):
        for ins in aload_instrs(k): A(ins)
    srd(16, 4, 0, 7168)
    BI = WF
    for u in range(3):
        A(f"buffer_load_dwordx4 {v(BI+4*u,4)}, {v(BO)}, s[16:19], s50 offen offset:{64*u}")
    A(f"buffer_load_dwordx2 {v(BI+12,2)}, {v(BO)}, s[16:19], s51 offen")
    dma(1)
    for k in range(4, 8):
        for ins in aload_instrs(k): A(ins)
    dma(2)
    A("s_mul_i32 s56, s43, 458752")
    A("s_add_u32 s56, s56, s21")
    A(f"s_add_u32 s56, s56, {O_HP}")
    srd(24, 6, "s56", 458752)
    A("s_lshl_b32 s57, s49, 10")
    A("s_lshl_b32 s58, s47, 10")
    A("s_add_u32 s58, s58, s52")
    A.vm_wait_for(R("v", BI, 14))
    for ft in range(7):
        for h in range(2):
            src = BI + 2 * ft + h
            A(f"v_lshlrev_b32 {v(acc(ft,0)+2*h)}, 16, {v(src)}")
            A(f"v_and_b32 {v(acc(ft,0)+2*h+1)}, 0xffff0000, {v(src)}")
        for tt in range(1, 4):
            for h in range(2):
                A(f"v_pk_mov_b32 {v(acc(ft,tt)+2*h,2)}, {v(acc(ft,0)+2*h,2)}, {v(acc(ft,0)+2*h,2)} op_sel:[0,1]")
    A(f"v_add_u32 {v(12)}, {2*SLOT}, {v(L16)}")
    def wread(k, ft):
        stage, st = k >> 2, k & 3
        slot = stage % NSLOT
        off = (slot & 1) * SLOT + st * 7168 + ft * 1024
        base = L16 if slot < 2 else 12
        return f"ds_read_b128 {v(WF+(k&1)*28+4*ft,4)}, {v(base)} offset:{off}"
    A("s_barrier")
    for ft in range(7):
        A(wread(0, ft))
    for k in range(32):
        stage, st = k >> 2, k & 3
        side = []
        if k + 1 < 32:
            side += [wread(k + 1, ft) for ft in range(7)]
        if k + DA < 32:
            side += aload_instrs(k + DA)
        if st == 3 and stage + 3 < 8:
            side += dma_instrs(stage + 3)
        A.lg_wait_for(R("v", WF + (k & 1) * 28, 28))
        A.vm_wait_for(R("a", (k % RA) * 16, 16))
        if st == 3 and stage < 7:
            G1_wait_stage(stage + 1)
            A("s_barrier")
        for ft in range(7):
            for tt in range(4):
                mfma32(v(acc(ft,tt),4), v(WF+(k&1)*28+4*ft,4), a((k%RA)*16+4*tt,4), v(acc(ft,tt),4))
                if side:
                    put(side.pop(0))
                    while side and side[0].startswith("s_"): put(side.pop(0))
        assert not side
    C1, C2 = 60, 62
    k2 = -2.0 * np.sqrt(2 / np.pi) * np.log2(np.e)
    A(f"s_mov_b32 s{C1}, 0x{int(f32_bits(k2*0.044715)):08x}")
    A(f"s_mov_b32 s{C1+1}, s{C1}")
    A(f"v_mov_b32 {v(TMP+16)}, 0x{int(f32_bits(k2)):08x}")
    A(f"v_mov_b32 {v(TMP+17)}, {v(TMP+16)}")
    def gelu4(r, t):
        for h in (0, 2):
            A(f"v_pk_mul_f32 {v(t+h,2)}, {v(r+h,2)}, {v(r+h,2)}")
        for h in (0, 2):
            A(f"v_pk_fma_f32 {v(t+h,2)}, {v(t+h,2)}, {s(C1,2)}, {v(TMP+16,2)}")
        for h in (0, 2):
            A(f"v_pk_mul_f32 {v(t+h,2)}, {v(t+h,2)}, {v(r+h,2)}")
        for i in range(4):
            A(f"v_exp_f32 {v(t+i)}, {v(t+i)}")
        for h in (0, 2):
            A(f"v_pk_add_f32 {v(t+h,2)}, {v(t+h,2)}, 1.0 op_sel_hi:[1,0]")
        for i in range(4):
            A(f"v_rcp_f32 {v(t+i)}, {v(t+i)}")
        for h in (0, 2):
            A(f"v_pk_mul_f32 {v(r+h,2)}, {v(t+h,2)}, {v(r+h,2)}")
    OUTR = WF
    cnt = 0
    for u in range(4):
        for tt in range(4):
            o = OUTR + 4 * (cnt % 8); cnt += 1
            nf = 2 if u < 3 else 1
            for t in range(nf):
                r = acc(2 * u + t, tt)
                gelu4(r, TMP + 4 * t + 8 * (tt & 1))
                A(f"v_cvt_pk_bf16_f32 {v(o+2*t)}, {v(r)}, {v(r+1)}")
                A(f"v_cvt_pk_bf16_f32 {v(o+2*t+1)}, {v(r+2)}, {v(r+3)}")
            A(f"s_add_u32 s59, {'s57' if u < 3 else 's58'}, {tt*114688}")
            if u < 3:
                A(f"buffer_store_dwordx4 {v(o,4)}, {v(L16)}, s[24:27], s59 offen offset:{1024*u}{ST}")
            else:
                A(f"buffer_store_dwordx2 {v(o,2)}, {v(L16)}, s[24:27], s59 offen{ST}")
    A("s_endpgm")
    kernels.append(("g1a_kernel", 208, RA * 16, 72))
    kernels.append(("g1b_kernel", 208, RA * 16, 72))

_g1_marks = {}
def G1_mark(stage):
    A.vm[-1] = [("m", stage)]
def G1_wait_stage(stage):
    A.vm_wait_for([("m", stage)])

def gen_g2():
    for l, nm in enumerate(("g2a_kernel", "g2b_kernel")):
        entry(nm)
        A("s_load_dwordx2 s[4:5], s[0:1], 56")
        A("s_load_dwordx2 s[6:7], s[0:1], 80")
        A(f"s_load_dwordx2 s[28:29], s[0:1], {80 if l == 0 else 64}")
        A(f"s_mov_b32 s20, {OFF_X2 if l == 0 else 0}")
        A(f"s_mov_b32 s21, {LOFF(l)}")
        A("s_cmp_lt_u32 s2, 256")
        A("s_cbranch_scc1 L_g2_body")
        A("s_endpgm")
    A.raw(".p2align 6")
    A.label("L_g2_body")
    LN, L16, WV, VG, VC, XO, BO = 1, 2, 3, 4, 5, 6, 7
    HO = 8
    ACC = 16
    XR = 144
    BB = 160
    RD = 168
    NS = 5
    def acc(tt, ft): return ACC + (tt * 4 + ft) * 4
    A(f"v_and_b32 {v(LN)}, 63, v0")
    A(f"v_lshlrev_b32 {v(L16)}, 4, {v(LN)}")
    A(f"v_lshrrev_b32 {v(WV)}, 6, v0")
    A(f"v_lshrrev_b32 {v(VG)}, 4, {v(LN)}")
    A(f"v_readfirstlane_b32 s22, {v(WV)}")
    A(f"v_and_b32 {v(VC)}, 15, {v(LN)}")
    A(f"v_lshlrev_b32 {v(BO)}, 4, {v(VG)}")
    A(f"v_lshl_add_u32 {v(XO)}, {v(VC)}, 11, {v(BO)}")
    for d in range(4):
        A(f"s_add_u32 s50, s22, {d}")
        A("s_and_b32 s50, s50, 3")
        A("s_mul_i32 s51, s50, 229376")
        A(f"v_add_u32 {v(HO+2*d)}, s51, {v(L16)}")
        A(f"v_add_u32 {v(HO+2*d+1)}, 114688, {v(HO+2*d)}")
        A(f"s_mul_i32 {s(60+d)}, s50, 24576")
    A("s_bfe_u32 s40, s2, 0x20001")
    A("s_lshl_b32 s40, s40, 2")
    A("s_bfe_u32 s41, s2, 0x20003")
    A("s_add_u32 s40, s40, s41")
    A("s_and_b32 s41, s2, 1")
    A("s_lshl_b32 s41, s41, 3")
    A("s_lshr_b32 s42, s2, 5")
    A("s_add_u32 s41, s41, s42")
    A("s_mul_i32 s44, s40, 917504")
    A("s_lshl_b32 s43, s22, 10")
    A("s_add_u32 s44, s44, s43")
    A("s_add_u32 s44, s44, s21")
    A(f"s_add_u32 s44, s44, {O_HP}")
    A("s_mul_i32 s45, s41, 458752")
    A("s_lshl_b32 s43, s22, 12")
    A("s_add_u32 s45, s45, s43")
    A(f"s_add_u32 s45, s45, {OFF_W2P}")
    A("s_lshl_b32 s46, s40, 2")
    A("s_add_u32 s46, s46, s22")
    A("s_lshl_b32 s46, s46, 16")
    A("s_lshl_b32 s47, s41, 7")
    A("s_add_u32 s46, s46, s47")
    A("s_add_u32 s48, s46, 32768")
    A("s_waitcnt lgkmcnt(0)")
    srd(8, 6, "s44", 917504)
    srd(12, 6, "s45", 458752)
    def loads(i):
        r = (i % NS) * 48
        out = [f"s_mov_b32 s54, {i*16384}", f"s_mov_b32 s55, {i*4096}"]
        for ft in range(4):
            out.append(f"buffer_load_dwordx4 {a(r+32+4*ft,4)}, {v(L16)}, s[12:15], s54 offen offset:{1024*ft}")
        for tt in range(8):
            out.append(f"buffer_load_dwordx4 {a(r+4*tt,4)}, {v(HO+tt)}, s[8:11], s55 offen")
        return out
    for i in range(NS - 1):
        for ins in loads(i): A(ins)
    A(f"s_add_u32 s49, s21, {O_X1}")
    srd(16, 6, "s49", 4 * MB)
    srd(24, 28, "s20", 4 * MB)
    srd(32, 4, 0, 2048)
    for i in range(28):
        r = (i % NS) * 48
        side = loads(i + NS - 1) if i + NS - 1 < 28 else []
        if i == 24:
            side = [f"buffer_load_dwordx4 {v(XR+8*t+4*u,4)}, {v(XO)}, s[16:19], {('s46','s48')[t]} offen offset:{64*u}"
                    for t in range(2) for u in range(2)]
            side += [f"buffer_load_dwordx4 {v(BB+4*u,4)}, {v(BO)}, s[32:35], s47 offen offset:{64*u}" for u in range(2)]
        n = 0
        for tt in range(8):
            A.vm_wait_for(R("a", r + 32, 16) + R("a", r + 4 * tt, 4))
            for ft in range(4):
                mfma32(v(acc(tt,ft),4), a(r+32+4*ft,4), a(r+4*tt,4), v(acc(tt,ft),4) if i else 0)
                n += 1
                if side and n % 2 == 0:
                    A(side.pop(0))
                    if side and side[0].startswith("s_"): A(side.pop(0))
        assert not side
    for d in range(1, 4):
        A(f"v_add_u32 {v(RD+40+d)}, {s(60+d)}, {v(L16)}")
        for n in range(8):
            A(f"ds_write_b128 {v(RD+40+d)}, {v(ACC+32*d+4*n,4)} offset:{8192*(d-1)+1024*n}")
    A(f"v_add_u32 {v(RD+41)}, s60, {v(L16)}")
    A("s_waitcnt vmcnt(0)")
    T = RD
    for t in range(2):
        for u in range(2):
            for h in range(2):
                r = ACC + (t * 4 + 2 * u + h) * 4
                for e in range(2):
                    x = XR + 8 * t + 4 * u + 2 * h + e
                    b = BB + 4 * u + 2 * h + e
                    A(f"v_lshlrev_b32 {v(T)}, 16, {v(x)}")
                    A(f"v_and_b32 {v(T+1)}, 0xffff0000, {v(x)}")
                    A(f"v_lshlrev_b32 {v(T+2)}, 16, {v(b)}")
                    A(f"v_and_b32 {v(T+3)}, 0xffff0000, {v(b)}")
                    A(f"v_pk_add_f32 {v(r+2*e,2)}, {v(r+2*e,2)}, {v(T,2)}")
                    A(f"v_pk_add_f32 {v(r+2*e,2)}, {v(r+2*e,2)}, {v(T+2,2)}")
    A("s_waitcnt lgkmcnt(0)")
    A("s_barrier")
    RB = ACC + 32
    for half in range(2):
        for sl in range(3):
            for n in range(4):
                nn = 4 * half + n
                A(f"ds_read_b128 {v(RB+32*sl+4*nn,4)}, {v(RD+41)} offset:{8192*sl+1024*nn}")
        for sl in range(3):
            A.lg_wait_for(R("v", RB + 32 * sl + 16 * half, 16))
            for n in range(0, 16, 2):
                A(f"v_pk_add_f32 {v(ACC+16*half+n,2)}, {v(ACC+16*half+n,2)}, {v(RB+32*sl+16*half+n,2)}")
        for u in range(2):
            o = XR + 8 * half + 4 * u
            for e in range(4):
                r = ACC + 16 * half + 8 * u + 2 * e
                A(f"v_cvt_pk_bf16_f32 {v(o+e)}, {v(r)}, {v(r+1)}")
            A(f"buffer_store_dwordx4 {v(o,4)}, {v(XO)}, s[24:27], {('s46','s48')[half]} offen offset:{64*u}{ST}")
    A("s_endpgm")
    kernels.append(("g2a_kernel", 216, NS * 48, 72))
    kernels.append(("g2b_kernel", 216, NS * 48, 72))

def main(out):
    head = open(os.path.join(os.path.dirname(__file__), "..", "cdna_kernels", NAME + ".s.ref")).read().split("\n")
    head = [h for h in head if h.startswith(";") and "@launch" not in h and "Override" not in h and "grid=ceil" not in h]
    launches = [
        ("k1a_kernel", 384, 512, 16448), ("k2a_kernel", 480, 512, 32768), ("k3a_kernel", 480, 512, 32768),
        ("g1a_kernel", 256, 256, 4 * 28672), ("g2a_kernel", 256, 256, 98304),
        ("k1b_kernel", 256, 512, 16448), ("k2b_kernel", 256, 512, 16384), ("k3b_kernel", 256, 512, 16384),
        ("g1b_kernel", 256, 256, 4 * 28672), ("g2b_kernel", 256, 256, 98304),
    ]
    for n, g, b, l in launches:
        head.append(f"; @launch kernel={n} grid=({g},1,1) block=({b},1,1) lds={l}")
    A.raw('.amdgcn_target "amdgcn-amd-amdhsa--gfx950"\n.text')
    for g in (gen_k1, gen_k2, gen_k3, gen_g1, gen_g2):
        A.maxv = A.maxa = A.maxs = -1
        g()
        nm, vg, ag, sg = kernels[-1]
        assert A.maxv < vg and A.maxa < ag + (ag == 0) * 0 + (A.maxa < 0) and A.maxs < sg, (nm, A.maxv, A.maxa, A.maxs)
        print(nm, "maxv", A.maxv, "maxa", A.maxa, "maxs", A.maxs, file=sys.stderr)
    T = tables()
    for k in ("k1", "k2", "k3"):
        A.raw(f".p2align 8\n.type tbl_{k},@object\ntbl_{k}:")
        for ch in T[k]:
            for ln_ in range(0, 64, 2):
                A.raw(".long " + ",".join(f"0x{x:x}" for x in ch[ln_:ln_+2].ravel()))
        A.raw(f".size tbl_{k}, {1024*len(T[k])}")
    A.raw('.section .rodata,"a"')
    for nm, vg, ag, sg in kernels:
        A.raw(".p2align 6")
        A.raw(kernel_desc(nm, vg, ag, sg).rstrip())
    open(out, "w").write("\n".join(head) + "\n" + A.text())
    print("nops inserted:", A.nops, file=sys.stderr)

if __name__ == "__main__":
    main(sys.argv[1] if len(sys.argv) > 1 else os.path.join(os.path.dirname(__file__), "..", "cdna_kernels", NAME + ".s"))
```

```python
import sys, os
sys.path.insert(0, os.path.dirname(os.path.abspath(__file__)))
from asmlib import *
from common import *

NAME = "interleave_layers__spectral_gfnet__dense_activation_gelu__prompt"
ST = " sc1"

A = Asm()
OPT = dict(x.split("=") if "=" in x else (x, "1") for x in os.environ.get("OPT", "").split(",") if x)
kernels = []

def mfma32(d, x, y, c):
    A(f"v_mfma_f32_16x16x32_bf16 {d}, {x}, {y}, {c}")
def mfma16(d, x, y, c):
    A(f"v_mfma_f32_16x16x16_bf16 {d}, {x}, {y}, {c}")

def entry(name):
    A.raw(f".globl {name}\n.p2align 8\n.type {name},@function\n{name}:")
    A.reset()

def srd(d, base, off, size):
    A(f"s_add_u32 {s(d)}, {s(base)}, {off}")
    A(f"s_addc_u32 {s(d+1)}, {s(base+1)}, 0")
    A(f"s_mov_b32 {s(d+2)}, {size}")
    A(f"s_mov_b32 {s(d+3)}, 0x20000")

def table_ptr(sr, tbl, tag):
    A(f"s_getpc_b64 {s(sr,2)}")
    A.raw(f"Lpc_{tag}:")
    A(f"s_add_u32 {s(sr)}, {s(sr)}, {tbl}-Lpc_{tag}")
    A(f"s_addc_u32 {s(sr+1)}, {s(sr+1)}, 0")

STAMP_OFF = 200 * MB
_nst = [0]
def stamp(reset=False):
    if "stamp" not in OPT: return
    if reset: _nst[0] = 0
    n = _nst[0]; _nst[0] += 1
    assert n < 12
    A(f"s_memrealtime {s(72+2*n,2)}" if n == 0 else f"s_memtime {s(72+2*n,2)}")
def stamp_flush(kid, tmp):
    if "stamp" not in OPT: return
    stamp()
    A("s_getreg_b32 s96, hwreg(HW_REG_HW_ID)")
    A("s_getreg_b32 s97, hwreg(HW_REG_XCC_ID)")
    A("s_waitcnt lgkmcnt(0)")
    A(f"s_add_u32 s68, s6, {STAMP_OFF + kid * MB}")
    A("s_addc_u32 s69, s7, 0")
    A(f"s_mov_b32 s70, {MB}")
    A("s_mov_b32 s71, 0x20000")
    A("s_lshl_b32 s98, s2, 3")
    A("s_add_u32 s98, s98, s22")
    A("s_lshl_b32 s98, s98, 6")
    A(f"v_mov_b32 {v(tmp)}, 0")
    for n in range(_nst[0]):
        A(f"v_mov_b32 {v(tmp+1)}, {s(72+2*n)}")
        A(f"buffer_store_dword {v(tmp+1)}, {v(tmp)}, s[68:71], s98 offen offset:{4*n}")
    A(f"v_mov_b32 {v(tmp+1)}, s96")
    A(f"buffer_store_dword {v(tmp+1)}, {v(tmp)}, s[68:71], s98 offen offset:56")
    A(f"v_mov_b32 {v(tmp+1)}, s97")
    A(f"buffer_store_dword {v(tmp+1)}, {v(tmp)}, s[68:71], s98 offen offset:60")

def wave_reduce2(x, y):
    for m in ("quad_perm:[1,0,3,2] row_mask:0xf bank_mask:0xf", "quad_perm:[2,3,0,1] row_mask:0xf bank_mask:0xf",
              "row_half_mirror row_mask:0xf bank_mask:0xf", "row_mirror row_mask:0xf bank_mask:0xf",
              "row_bcast:15 row_mask:0xa bank_mask:0xf", "row_bcast:31 row_mask:0xc bank_mask:0xf"):
        A(f"v_add_f32_dpp {v(x)}, {v(x)}, {v(x)} {m}")
        A(f"v_add_f32_dpp {v(y)}, {v(y)}, {v(y)} {m}")

def cmul_pk(ore, oim, xre, xim, tc, ts, sign):
    for h in (0, 2):
        A(f"v_pk_mul_f32 {v(ore+h,2)}, {v(xre+h,2)}, {v(tc+h,2)}")
        A(f"v_pk_mul_f32 {v(oim+h,2)}, {v(xim+h,2)}, {v(tc+h,2)}")
    neg = " neg_lo:[0,1,0] neg_hi:[0,1,0]"
    for h in (0, 2):
        A(f"v_pk_fma_f32 {v(ore+h,2)}, {v(xim+h,2)}, {v(ts+h,2)}, {v(ore+h,2)}" + (neg if sign > 0 else ""))
        A(f"v_pk_fma_f32 {v(oim+h,2)}, {v(xre+h,2)}, {v(ts+h,2)}, {v(oim+h,2)}" + (neg if sign < 0 else ""))

def gen_k1():
    entry("k1a_kernel")
    A("s_load_dwordx2 s[4:5], s[0:1], 0")
    A("s_load_dwordx2 s[6:7], s[0:1], 80")
    A("s_mov_b32 s20, 0")
    A(f"s_mov_b32 s21, {LOFF(0)+O_F1}")
    A("s_cmp_lt_u32 s2, 256")
    A("s_cbranch_scc1 L_k1_body")
    A("s_cmp_lt_u32 s2, 384")
    A("s_cbranch_scc1 L_wpack")
    A("s_endpgm")
    entry("k1b_kernel")
    A("s_load_dwordx2 s[4:5], s[0:1], 80")
    A("s_load_dwordx2 s[6:7], s[0:1], 80")
    A(f"s_mov_b32 s20, {OFF_X2}")
    A(f"s_mov_b32 s21, {LOFF(1)+O_F1}")
    A("s_cmp_lt_u32 s2, 256")
    A("s_cbranch_scc1 L_k1_body")
    A("s_endpgm")
    snap = A.snapshot()
    A.raw(".p2align 6")
    A.label("L_k1_body")
    LN, VO, L16, WV, VG, VC = 1, 2, 3, 4, 5, 6
    X = 8
    Cc, Ns, Ps, Cd, Nd, Pd, C1, ONE = 16, 20, 24, 28, 32, 36, 40, 44
    TC, TS = 48, 56
    P = 64
    RR, II, Z, CM = 72, 80, 88, 96
    BR, BI = 100, 108
    SUM, SQ, T0, T1, T2, T3 = 116, 117, 118, 119, 120, 121
    MC = 122
    table_ptr(30, "tbl_k1", "k1")
    A(f"v_and_b32 {v(LN)}, 63, v0")
    A(f"v_lshlrev_b32 {v(L16)}, 4, {v(LN)}")
    A(f"v_add_u32 {v(7)}, 4096, {v(L16)}")
    A(f"global_load_dwordx4 {v(Cc,4)}, {v(L16)}, s[30:31]")
    A(f"global_load_dwordx4 {v(Ns,4)}, {v(L16)}, s[30:31] offset:1024")
    A(f"v_lshrrev_b32 {v(WV)}, 6, v0")
    A(f"v_lshrrev_b32 {v(VG)}, 4, {v(LN)}")
    A(f"v_readfirstlane_b32 s22, {v(WV)}")
    A(f"v_and_b32 {v(VC)}, 15, {v(LN)}")
    A(f"v_lshlrev_b32 {v(VO)}, 9, {v(VG)}")
    A(f"v_lshl_add_u32 {v(VO)}, {v(VC)}, 2, {v(VO)}")
    A("s_lshl_b32 s23, s22, 8")
    A("s_add_u32 s23, s23, s2")
    A("s_lshl_b32 s23, s23, 11")
    A("s_waitcnt lgkmcnt(0)")
    srd(8, 4, "s20", 4 * MB)
    for t in range(8):
        A(f"buffer_load_dword {v(X+t)}, {v(VO)}, s[8:11], s23 offen offset:{64*t}")
    A(f"global_load_dwordx4 {v(TC,4)}, {v(L16)}, s[30:31] offset:2048")
    A(f"global_load_dwordx4 {v(TC+4,4)}, {v(L16)}, s[30:31] offset:3072")
    A(f"global_load_dwordx4 {v(TS,4)}, {v(7)}, s[30:31]")
    A(f"global_load_dwordx4 {v(TS+4,4)}, {v(7)}, s[30:31] offset:1024")
    srd(12, 6, "s21", 4 * MB)
    A("s_mov_b32 s24, 0x00010001")
    A("s_mov_b32 s25, 0x00010001")
    A("s_mov_b32 s26, 1")
    A("s_mov_b32 s27, 0")
    A("s_mov_b32 s28, 0x05040100")
    A("s_mov_b32 s29, 0x07060302")
    A(f"v_lshrrev_b32 {v(T0)}, 1, {v(VC)}")
    A(f"v_and_b32 {v(T1)}, 1, {v(VC)}")
    A(f"v_lshlrev_b32 {v(T1)}, 9, {v(T1)}")
    A(f"v_lshlrev_b32 {v(T2)}, 9, {v(VG)}")
    A(f"v_add_u32 {v(T2)}, s2, {v(T2)}")
    A(f"v_mad_u32_u24 {v(T2)}, {v(T0)}, {v(T2)}, {v(T1)}")
    A(f"v_lshl_add_u32 {v(T3)}, {v(T0)}, 8, {v(T2)}")
    A(f"v_and_b32 {v(T2)}, 2047, {v(T2)}")
    A(f"v_and_b32 {v(T3)}, 2047, {v(T3)}")
    A(f"v_cvt_f32_u32 {v(T2)}, {v(T2)}")
    A(f"v_cvt_f32_u32 {v(T3)}, {v(T3)}")
    A(f"v_mul_f32 {v(T2)}, 0x3a000000, {v(T2)}")
    A(f"v_mul_f32 {v(T3)}, 0x3a000000, {v(T3)}")
    A(f"v_cos_f32 {v(MC)}, {v(T2)}")
    A(f"v_sin_f32 {v(MC+1)}, {v(T2)}")
    A(f"v_cos_f32 {v(MC+2)}, {v(T3)}")
    A(f"v_sin_f32 {v(MC+3)}, {v(T3)}")
    for i in range(4):
        A(f"v_mov_b32 {v(ONE+i)}, 0x3f803f80")
    A(f"v_mov_b32 {v(T0)}, 0xbf803f80")
    A.vm_wait_for(R("v", Cc, 8))
    for i in range(4):
        A(f"v_xor_b32 {v(Ps+i)}, 0x80008000, {v(Ns+i)}")
        A(f"v_xor_b32 {v(Cd+i)}, 0x80000000, {v(Cc+i)}")
        A(f"v_xor_b32 {v(Nd+i)}, 0x80000000, {v(Ns+i)}")
        A(f"v_xor_b32 {v(Pd+i)}, 0x00008000, {v(Ns+i)}")
        A(f"v_cndmask_b32 {v(C1+i)}, {v(Cc+i)}, {v(T0)}, s[24:25]")
    LW, LR, GO = 126, 127, 7
    A(f"s_lshl_b32 s32, s22, 11")
    A(f"v_add_u32 {v(LW)}, s32, {v(L16)}")
    A(f"v_lshlrev_b32 {v(LR)}, 12, {v(VG)}")
    A(f"v_lshl_add_u32 {v(LR)}, {v(VC)}, 4, {v(LR)}")
    A(f"s_lshl_b32 s33, s22, 8")
    A(f"v_add_u32 {v(LR)}, s33, {v(LR)}")
    A.vm_wait_for(R("v", X, 8))
    for u in range(4):
        A(f"v_perm_b32 {v(P+u)}, {v(X+2*u+1)}, {v(X+2*u)}, s28")
        A(f"v_perm_b32 {v(P+4+u)}, {v(X+2*u+1)}, {v(X+2*u)}, s29")
    for q in range(2):
        mfma32(v(RR+4*q,4), v(P+4*q,4), v(C1,4), 0)
        mfma32(v(II+4*q,4), v(P+4*q,4), v(Ns,4), 0)
    for t in range(8):
        A(f"v_dot2_f32_bf16 {v(SUM)}, {v(X+t)}, {v(ONE)}, {v(SUM) if t else 0}")
        A(f"v_dot2_f32_bf16 {v(SQ)}, {v(X+t)}, {v(X+t)}, {v(SQ) if t else 0}")
    wave_reduce2(SUM, SQ)
    A(f"v_readlane_b32 s34, {v(SUM)}, 63")
    A(f"v_readlane_b32 s35, {v(SQ)}, 63")
    A.vm_wait_for(R("v", TC, 16))
    A(f"v_lshlrev_b32 {v(GO)}, 20, {v(VG)}")
    A(f"v_lshl_add_u32 {v(GO)}, {v(VC)}, 4, {v(GO)}")
    A(f"v_mov_b32 {v(T0)}, 0xbd000000")
    A(f"v_mul_f32 {v(CM)}, s34, {v(T0)}")
    for i in range(1, 4):
        A(f"v_mov_b32 {v(CM+i)}, {v(CM)}")
    for q in range(2):
        mfma32(v(Z+4*q,4), v(P+4*q,4), v(ONE,4), v(CM,4))
    for q in range(2):
        cmul_pk(BR+4*q, BI+4*q, RR+4*q, II+4*q, TC+4*q, TS+4*q, -1)
    A(f"v_mov_b32 {v(T1)}, 0x3a800000")
    A(f"v_mul_f32 {v(T0)}, s34, {v(T1)}")
    A(f"v_mul_f32 {v(T1)}, s35, {v(T1)}")
    A(f"v_fma_f32 {v(T1)}, -{v(T0)}, {v(T0)}, {v(T1)}")
    A(f"v_max_f32 {v(T1)}, 0, {v(T1)}")
    A(f"v_add_f32 {v(T1)}, 0x3727c5ac, {v(T1)}")
    A(f"v_rsq_f32 {v(T1)}, {v(T1)}")
    PBr, PBi, Qr, Qi = RR, RR+4, II, II+4
    for i in range(4):
        A(f"v_cvt_pk_bf16_f32 {v(PBr+i)}, {v(BR+i)}, {v(BR+4+i)}")
        A(f"v_cvt_pk_bf16_f32 {v(PBi+i)}, {v(BI+i)}, {v(BI+4+i)}")
    A(f"s_lshl_b32 s36, s22, 2")
    A(f"v_mov_b32 {v(T2)}, s36")
    A(f"ds_write_b32 {v(T2)}, {v(T1)} offset:16384")
    O1r, O1i, O0r, O0i, E = BR, BR+4, BI, BI+4, CM
    mfma32(v(O1r,4), v(Cd,4), v(PBr,4), 0)
    mfma32(v(O1i,4), v(Cd,4), v(PBi,4), 0)
    mfma32(v(O1r,4), v(Pd,4), v(PBi,4), v(O1r,4))
    mfma32(v(O1i,4), v(Nd,4), v(PBr,4), v(O1i,4))
    for i in range(4):
        A(f"v_cvt_pk_bf16_f32 {v(Qr+i)}, {v(Z+i)}, {v(Z+4+i)}")
        A(f"v_cndmask_b32 {v(Qr+i)}, {v(PBr+i)}, {v(Qr+i)}, s[24:25]")
        A(f"v_cndmask_b32 {v(Qi+i)}, {v(PBi+i)}, 0, s[24:25]")
    mfma32(v(E,4), v(Cd,4), v(Qr,4), 0)
    mfma32(v(O0r,4), v(Cc,4), v(Qr,4), 0)
    mfma32(v(O0i,4), v(Cc,4), v(Qi,4), 0)
    mfma32(v(O0r,4), v(Ps,4), v(Qi,4), v(O0r,4))
    mfma32(v(O0i,4), v(Ns,4), v(Qr,4), v(O0i,4))
    Wt = Z
    for i in range(4):
        A(f"v_cvt_pk_bf16_f32 {v(Wt+4+i)}, {v(O1r+i)}, {v(O1i+i)}")
    A(f"ds_write_b128 {v(LW)}, {v(Wt+4,4)} offset:1024")
    A(f"v_mul_f32 {v(E)}, 0.5, {v(E)}")
    A(f"v_cndmask_b32 {v(O0r)}, {v(O0r)}, {v(E)}, s[26:27]")
    for i in range(4):
        A(f"v_cvt_pk_bf16_f32 {v(Wt+i)}, {v(O0r+i)}, {v(O0i+i)}")
    A(f"ds_write_b128 {v(LW)}, {v(Wt,4)}")
    A(f"v_lshlrev_b32 {v(T2)}, 3, {v(VG)}")
    A("s_waitcnt lgkmcnt(0)")
    A("s_barrier")
    LA = 64
    A(f"ds_read_b64 {v(T0,2)}, {v(T2)} offset:16384")
    A(f"ds_read_b128 {v(LA,4)}, {v(LR)}")
    A(f"ds_read_b128 {v(LA+4,4)}, {v(LR)} offset:2048")
    A("s_lshl_b32 s37, s2, 12")
    A("s_lshl_b32 s38, s22, 9")
    A("s_add_u32 s37, s37, s38")
    A("s_waitcnt lgkmcnt(2)")
    A(f"v_mul_f32 {v(MC)}, {v(MC)}, {v(T0)}")
    A(f"v_mul_f32 {v(MC+1)}, {v(MC+1)}, {v(T0)}")
    A(f"v_mul_f32 {v(MC+2)}, {v(MC+2)}, {v(T1)}")
    A(f"v_mul_f32 {v(MC+3)}, {v(MC+3)}, {v(T1)}")
    A(f"v_cvt_pk_bf16_f32 {v(T2)}, {v(MC)}, {v(MC+1)}")
    A(f"v_cvt_pk_bf16_f32 {v(T3)}, {v(MC+2)}, {v(MC+3)}")
    A("s_waitcnt lgkmcnt(0)")
    A(f"v_swap_b32 {v(LA+1)}, {v(LA+4)}")
    A(f"v_swap_b32 {v(LA+3)}, {v(LA+6)}")
    D = 72
    pairs = [LA, LA+4, LA+2, LA+6]
    for t in range(4):
        mfma16(v(D+4*t,4), v(T2,2), v(pairs[t],2), 0)
    OUT = 100
    for t in range(4):
        A(f"v_cvt_pk_bf16_f32 {v(OUT+2*t)}, {v(D+4*t)}, {v(D+4*t+1)}")
        A(f"v_cvt_pk_bf16_f32 {v(OUT+2*t+1)}, {v(D+4*t+2)}, {v(D+4*t+3)}")
        if t & 1:
            A(f"buffer_store_dwordx4 {v(OUT+2*t-2,4)}, {v(GO)}, s[12:15], s37 offen offset:{256*(t>>1)}{ST}")
    A("s_endpgm")

    A.reset()
    A.raw(".p2align 6")
    A.label("L_wpack")
    A("s_load_dwordx4 s[16:19], s[0:1], 8")
    A("s_sub_u32 s3, s2, 256")
    A("s_and_b32 s40, s3, 7")
    A("s_lshr_b32 s41, s3, 3")
    A(f"v_and_b32 {v(LN)}, 63, v0")
    A(f"v_lshrrev_b32 {v(WV)}, 6, v0")
    A(f"v_lshrrev_b32 {v(VC)}, 2, {v(LN)}")
    A(f"v_readfirstlane_b32 s22, {v(WV)}")
    A(f"v_and_b32 {v(VG)}, 3, {v(LN)}")
    A("s_lshr_b32 s42, s41, 2")
    A("s_lshl_b32 s42, s42, 6")
    A("s_and_b32 s43, s41, 3")
    A("s_lshl_b32 s43, s43, 2")
    A("s_add_u32 s42, s42, s43")
    A("s_lshl_b32 s42, s42, 3")
    A("s_add_u32 s42, s42, s40")
    A(f"v_lshl_add_u32 {v(8)}, {v(VG)}, 3, s42")
    A("s_cmp_ge_u32 s22, 4")
    A("s_cselect_b32 s44, -1, 1")
    A("s_cselect_b32 s45, 0x80000000, 0")
    A("s_cselect_b32 s46, 3, 0")
    A("s_lshl_b32 s47, s22, 7")
    A("s_sub_u32 s48, 928, s47")
    A("s_cmp_ge_u32 s22, 4")
    A("s_cselect_b32 s47, s48, s47")
    A("s_cselect_b32 s48, 16, 0")
    A(f"v_mov_b32 {v(9)}, s48")
    A(f"v_cmp_eq_u32 vcc, 0, {v(VC)}")
    A(f"v_cndmask_b32 {v(9)}, {v(VC)}, {v(9)}, vcc")
    A(f"v_mul_i32_i24 {v(9)}, s44, {v(9)}")
    A(f"v_add_u32 {v(9)}, s47, {v(9)}")
    A(f"v_lshlrev_b32 {v(9)}, 1, {v(9)}")
    A("s_cmp_eq_u32 s22, 0")
    A("s_cselect_b32 s49, 1024, 0")
    A(f"v_mov_b32 {v(10)}, s49")
    A(f"v_cndmask_b32 {v(10)}, 0, {v(10)}, vcc")
    A("s_mov_b32 s50, 1026")
    for i in range(4):
        A(f"v_add_u32 {v(12+i)}, {128*i}, {v(8)}")
        A(f"v_mul_i32_i24 {v(12+i)}, s44, {v(12+i)}")
        A(f"v_and_b32 {v(12+i)}, 2047, {v(12+i)}")
        A(f"v_mad_u32_u24 {v(12+i)}, {v(12+i)}, s50, {v(9)}")
        A(f"v_add_u32 {v(16+i)}, {v(12+i)}, {v(10)}")
    A("s_waitcnt lgkmcnt(0)")
    srd(8, 16, 0, 2048 * 1026)
    srd(52, 18, 0, 2048 * 1026)
    srd(12, 6, OFF_WP, 4 * MB)
    WRr, WIr = 24, 40
    for t in range(4):
        for i in range(4):
            vo = (16 if t == 0 else 12) + i
            A(f"buffer_load_ushort {v(WRr+4*t+i)}, {v(vo)}, s[8:11], 0 offen offset:{64*t}")
            A(f"buffer_load_ushort {v(WIr+4*t+i)}, {v(vo)}, s[52:55], 0 offen offset:{64*t}")
    A(f"v_lshlrev_b32 {v(20)}, 12, {v(VC)}")
    A(f"v_lshl_add_u32 {v(20)}, {v(VG)}, 4, {v(20)}")
    A("s_lshr_b32 s56, s40, 1")
    A("s_lshl_b32 s56, s56, 20")
    A("s_and_b32 s57, s40, 1")
    A("s_lshl_b32 s57, s57, 10")
    A("s_add_u32 s56, s56, s57")
    A("s_lshl_b32 s57, s41, 6")
    A("s_add_u32 s56, s56, s57")
    A("s_lshl_b32 s57, s22, 17")
    A("s_add_u32 s56, s56, s57")
    for t in range(4):
        A(f"s_xor_b32 s57, s46, {t}")
        A("s_lshr_b32 s58, s57, 1")
        A("s_lshl_b32 s58, s58, 16")
        A("s_and_b32 s57, s57, 1")
        A("s_lshl_b32 s57, s57, 11")
        A("s_add_u32 s57, s57, s58")
        A(f"s_add_u32 {s(60+t)}, s56, s57")
    for t in range(4):
        A.vm_wait_for(R("v", WRr+4*t, 4) + R("v", WIr+4*t, 4))
        for i in range(4):
            A(f"v_lshl_or_b32 {v(WRr+4*t+i)}, {v(WIr+4*t+i)}, 16, {v(WRr+4*t+i)}")
            A(f"v_xor_b32 {v(WRr+4*t+i)}, s45, {v(WRr+4*t+i)}")
        A(f"buffer_store_dwordx4 {v(WRr+4*t,4)}, {v(20)}, s[12:15], {s(60+t)} offen{ST}")
    A("s_endpgm")
    kernels.append(("k1a_kernel", 128, 0, 100))
    kernels.append(("k1b_kernel", 128, 0, 100))

def gen_gpack(which):
    A.reset()
    A.raw(".p2align 6")
    A.label(f"L_gpack{which}")
    pitch = 7168 if which == 1 else 2048
    A(f"s_load_dwordx2 s[16:17], s[0:1], {32 if which == 1 else 48}")
    A("s_sub_u32 s3, s2, 256")
    if which == 1:
        A("s_and_b32 s40, s3, 15")
        A("s_lshr_b32 s41, s3, 4")
    else:
        A("s_lshr_b32 s40, s3, 2")
        A("s_and_b32 s41, s3, 3")
    A("v_and_b32 v1, 63, v0")
    A("v_lshrrev_b32 v4, 6, v0")
    A("v_lshrrev_b32 v5, 5, v1")
    A("v_readfirstlane_b32 s22, v4")
    A("v_and_b32 v6, 31, v1")
    A("v_lshlrev_b32 v7, 2, v5")
    A("v_xor_b32 v7, v7, v6")
    A("v_xor_b32 v8, 8, v7")
    A(f"v_mul_u32_u24 v5, {pitch}, v5")
    A("v_lshl_add_u32 v7, v7, 4, v5")
    A("v_lshl_add_u32 v8, v8, 4, v5")
    A("s_lshl_b32 s42, s40, 6")
    A("s_lshl_b32 s43, s22, 3")
    A("s_add_u32 s42, s42, s43")
    A(f"s_mul_i32 s42, s42, {pitch}")
    A("s_lshl_b32 s43, s41, 9")
    A("s_add_u32 s42, s42, s43")
    A("s_lshl_b32 s44, s22, 12")
    A("s_waitcnt lgkmcnt(0)")
    srd(8, 16, 0, 1024 * 3584 * 2)
    srd(12, 6, OFF_W1P if which == 1 else OFF_W2P, 1024 * 3584 * 2)
    for n in range(4):
        A(f"s_add_u32 m0, s44, {1024*n}")
        A(f"s_add_u32 s45, s42, {2*n*pitch}")
        A(f"buffer_load_dwordx4 v{7 + (n & 1)}, s[8:11], s45 offen lds")
    A("v_lshrrev_b32 v9, 4, v1")
    A("v_bfe_u32 v10, v1, 2, 2")
    A("v_and_b32 v11, 3, v1")
    A("v_lshl_add_u32 v9, v9, 3, v10")
    A("v_lshlrev_b32 v9, 9, v9")
    A("v_lshl_add_u32 v9, v11, 4, v9")
    A("s_lshr_b32 s46, s22, 2")
    A("s_lshl_b32 s47, s46, 14")
    A("v_add_u32 v9, s47, v9")
    A("s_and_b32 s48, s22, 3")
    A("s_lshl_b32 s48, s48, 1")
    A("v_xor_b32 v12, s48, v10")
    A("v_xor_b32 v13, 1, v12")
    A("v_lshl_add_u32 v12, v12, 6, v9")
    A("v_lshl_add_u32 v13, v13, 6, v9")
    A("v_lshlrev_b32 v14, 4, v1")
    A("s_lshl_b32 s49, s40, 1")
    A("s_add_u32 s49, s49, s46")
    A("s_lshl_b32 s50, s41, 3")
    A("s_add_u32 s50, s50, s48")
    for x in range(2):
        for t in range(2):
            d = 60 + 2 * x + t
            if which == 1:
                A(f"s_lshl_b32 s51, s50, 1")
                A(f"s_add_u32 s51, s51, {2*x+t}")
                A("s_mul_i32 s52, s51, 9363")
                A("s_lshr_b32 s52, s52, 16")
                A("s_mul_i32 s53, s52, 7")
                A("s_sub_u32 s53, s51, s53")
                A("s_sub_u32 s54, s53, 1")
                A("s_cmp_eq_u32 s53, 0")
                A("s_cselect_b32 s54, 6, s54")
                A("s_bitcmp1_b32 s52, 0")
                A("s_cselect_b32 s53, s54, s53")
                A("s_lshl_b32 s52, s52, 5")
                A("s_add_u32 s52, s52, s49")
                A("s_mul_i32 s52, s52, 7")
                A("s_add_u32 s52, s52, s53")
                A(f"s_lshl_b32 s{d}, s52, 10")
            else:
                A("s_lshr_b32 s52, s50, 1")
                A("s_mul_i32 s52, s52, 112")
                A("s_add_u32 s52, s52, s49")
                A("s_lshl_b32 s52, s52, 12")
                A(f"s_add_u32 s{d}, s52, {(2*x+t)*1024}")
    A("s_waitcnt vmcnt(0)")
    A("s_barrier")
    for x in range(2):
        for t in range(2):
            d = 16 + 4 * (2 * x + t)
            A(f"ds_read_b64_tr_b16 {v(d,2)}, v{12+x} offset:{8*t}")
            A(f"ds_read_b64_tr_b16 {v(d+2,2)}, v{12+x} offset:{8*t+2048}")
    for n in range(4):
        A.lg_wait_for(R("v", 16 + 4 * n, 4))
        A(f"buffer_store_dwordx4 {v(16+4*n,4)}, v14, s[12:15], s{60+n} offen{ST}")
    A("s_endpgm")

def gen_k2():
    for l, nm in enumerate(("k2a_kernel", "k2b_kernel")):
        entry(nm)
        A("s_load_dwordx2 s[6:7], s[0:1], 80")
        A(f"s_mov_b32 s20, {LOFF(l)+O_F1}")
        A(f"s_mov_b32 s21, {LOFF(l)+O_F2}")
        A("s_cmp_lt_u32 s2, 256")
        A("s_cbranch_scc1 L_k2_body")
        if l == 0:
            A("s_cmp_lt_u32 s2, 480")
            A("s_cbranch_scc1 L_gpack1")
        A("s_endpgm")
    A.raw(".p2align 6")
    A.label("L_k2_body")
    LN, L16, WV, VG, VC, GA, LA = 1, 2, 3, 4, 5, 6, 7
    Dre, Dim, TC, TS = 8, 12, 16, 20
    WW = 24
    WR, WI = 32, 40
    Q = 48
    Dr, Di = 56, 64
    Br, Bi = 72, 80
    T0, T1 = 88, 89
    table_ptr(30, "tbl_k2", "k2")
    A(f"v_and_b32 {v(LN)}, 63, v0")
    A(f"v_lshlrev_b32 {v(L16)}, 4, {v(LN)}")
    for n, d in enumerate((Dre, Dim, TC, TS)):
        A(f"global_load_dwordx4 {v(d,4)}, {v(L16)}, s[30:31] offset:{1024*n}")
    A(f"v_lshrrev_b32 {v(WV)}, 6, v0")
    A(f"v_lshrrev_b32 {v(VG)}, 4, {v(LN)}")
    A(f"v_readfirstlane_b32 s22, {v(WV)}")
    A(f"v_and_b32 {v(VC)}, 15, {v(LN)}")
    A("s_and_b32 s40, s2, 7")
    A("s_lshr_b32 s41, s2, 3")
    A("s_lshl_b32 s40, s40, 5")
    A("s_add_u32 s40, s40, s41")
    A("s_lshr_b32 s41, s40, 6")
    A("s_and_b32 s42, s40, 63")
    A(f"v_lshrrev_b32 {v(T0)}, 2, {v(LN)}")
    A(f"v_and_b32 {v(T1)}, 3, {v(LN)}")
    A(f"v_xor_b32 {v(T1)}, {v(T1)}, {v(VG)}")
    A(f"v_lshlrev_b32 {v(GA)}, 12, {v(T0)}")
    A(f"v_lshl_add_u32 {v(GA)}, {v(T1)}, 4, {v(GA)}")
    A("s_lshl_b32 s43, s41, 20")
    A("s_lshl_b32 s44, s42, 6")
    A("s_add_u32 s43, s43, s44")
    A("s_lshl_b32 s44, s22, 17")
    A("s_add_u32 s43, s43, s44")
    A("s_add_u32 s44, s43, 65536")
    A("s_lshl_b32 s45, s22, 11")
    A("s_lshl_b32 s46, s40, 3")
    A("s_add_u32 s46, s46, s22")
    A("s_lshl_b32 s46, s46, 11")
    A("s_waitcnt lgkmcnt(0)")
    srd(8, 6, "s20", 4 * MB)
    A("s_mov_b32 m0, s45")
    A(f"buffer_load_dwordx4 {v(GA)}, s[8:11], s43 offen lds")
    A("s_add_u32 m0, s45, 1024")
    A(f"buffer_load_dwordx4 {v(GA)}, s[8:11], s44 offen lds")
    srd(16, 6, OFF_WP, 4 * MB)
    A(f"buffer_load_dwordx4 {v(WW,4)}, {v(L16)}, s[16:19], s46 offen")
    A(f"buffer_load_dwordx4 {v(WW+4,4)}, {v(L16)}, s[16:19], s46 offen offset:1024")
    srd(12, 6, "s21", 4 * MB)
    A("s_lshr_b32 s47, s22, 1")
    A(f"v_lshrrev_b32 {v(T0)}, 2, {v(VC)}")
    A(f"v_xor_b32 {v(T0)}, s47, {v(T0)}")
    A(f"v_lshlrev_b32 {v(LA)}, 12, {v(VG)}")
    A(f"v_lshl_add_u32 {v(LA)}, {v(VC)}, 6, {v(LA)}")
    A(f"v_lshl_add_u32 {v(LA)}, {v(T0)}, 4, {v(LA)}")
    A("s_and_b32 s47, s22, 1")
    A("s_lshl_b32 s47, s47, 3")
    A(f"v_add_u32 {v(LA)}, s47, {v(LA)}")
    A(f"v_add_u32 {v(T1)}, s45, {v(L16)}")
    A("s_waitcnt vmcnt(2)")
    A("s_barrier")
    for n, i in enumerate((0, 2, 1, 3)):
        A(f"ds_read_b64 {v(Q+2*n,2)}, {v(LA)} offset:{1024*i}")
    A("s_waitcnt vmcnt(0)")
    for i in range(8):
        A(f"v_lshlrev_b32 {v(WR+i)}, 16, {v(WW+i)}")
        A(f"v_and_b32 {v(WI+i)}, 0xffff0000, {v(WW+i)}")
    A("s_waitcnt lgkmcnt(0)")
    A(f"v_swap_b32 {v(Q+1)}, {v(Q+4)}")
    A(f"v_swap_b32 {v(Q+3)}, {v(Q+6)}")

    def fft256():
        for c in range(2):
            mfma32(v(Dr+4*c,4), v(Q+4*c,4), v(Dre,4), 0)
            mfma32(v(Di+4*c,4), v(Q+4*c,4), v(Dim,4), 0)
        for c in range(2):
            cmul_pk(Br+4*c, Bi+4*c, Dr+4*c, Di+4*c, TC, TS, -1)
            for i in range(4):
                A(f"v_cvt_pk_bf16_f32 {v(Q+4*c+i)}, {v(Br+4*c+i)}, {v(Bi+4*c+i)}")
            mfma32(v(Dr+4*c,4), v(Dre,4), v(Q+4*c,4), 0)
            mfma32(v(Di+4*c,4), v(Dim,4), v(Q+4*c,4), 0)
    fft256()
    for c in range(2):
        cmul_pk(Br+4*c, Bi+4*c, Dr+4*c, Di+4*c, WR+4*c, WI+4*c, +1)
        for i in range(4):
            A(f"v_cvt_pk_bf16_f32 {v(Q+4*c+i)}, {v(Bi+4*c+i)}, {v(Br+4*c+i)}")
    fft256()
    for i in range(4):
        for c in range(2):
            A(f"v_cvt_pk_bf16_f32 {v(Q+2*i+c)}, {v(Di+4*c+i)}, {v(Dr+4*c+i)}")
        A(f"ds_write_b64 {v(LA)}, {v(Q+2*i,2)} offset:{1024*i}")
    A("s_waitcnt lgkmcnt(0)")
    A("s_barrier")
    A(f"ds_read_b128 {v(Br,4)}, {v(T1)}")
    A(f"ds_read_b128 {v(Br+4,4)}, {v(T1)} offset:1024")
    A("s_waitcnt lgkmcnt(1)")
    A(f"buffer_store_dwordx4 {v(Br,4)}, {v(GA)}, s[12:15], s43 offen{ST}")
    A("s_waitcnt lgkmcnt(0)")
    A(f"buffer_store_dwordx4 {v(Br+4,4)}, {v(GA)}, s[12:15], s44 offen{ST}")
    A("s_endpgm")
    gen_gpack(1)
    kernels.append(("k2a_kernel", 96, 0, 100))
    kernels.append(("k2b_kernel", 96, 0, 100))

def gen_k3():
    for l, nm in enumerate(("k3a_kernel", "k3b_kernel")):
        entry(nm)
        A(f"s_load_dwordx2 s[4:5], s[0:1], {0 if l == 0 else 80}")
        A("s_load_dwordx2 s[6:7], s[0:1], 80")
        A(f"s_mov_b32 s20, {0 if l == 0 else OFF_X2}")
        A(f"s_mov_b32 s21, {LOFF(l)}")
        A("s_cmp_lt_u32 s2, 256")
        A("s_cbranch_scc1 L_k3_body")
        if l == 0:
            A("s_cmp_lt_u32 s2, 480")
            A("s_cbranch_scc1 L_gpack2")
        A("s_endpgm")
    A.raw(".p2align 6")
    A.label("L_k3_body")
    LN, L16, WV, VG, VC, GO, T4 = 1, 2, 3, 4, 5, 6, 7
    GC = 8
    HH = 24
    TC, TS = 32, 40
    IN = 48
    XR = 56
    Y = 64
    D = 80
    P0, P1, P0m, P1n = 96, 100, 104, 108
    E = 112
    T0, T1, T2, T3 = 120, 121, 122, 123
    LW, LR, XO, ZO = 124, 125, 126, 127
    table_ptr(30, "tbl_k3", "k3")
    A(f"v_and_b32 {v(LN)}, 63, v0")
    A(f"v_lshlrev_b32 {v(L16)}, 4, {v(LN)}")
    A(f"v_lshrrev_b32 {v(WV)}, 6, v0")
    A(f"v_lshrrev_b32 {v(VG)}, 4, {v(LN)}")
    A(f"v_readfirstlane_b32 s22, {v(WV)}")
    A(f"v_and_b32 {v(VC)}, 15, {v(LN)}")
    A(f"v_lshlrev_b32 {v(GO)}, 20, {v(VG)}")
    A(f"v_lshl_add_u32 {v(GO)}, {v(VC)}, 4, {v(GO)}")
    A(f"v_lshlrev_b32 {v(XO)}, 6, {v(VC)}")
    A(f"v_lshl_add_u32 {v(XO)}, {v(VG)}, 4, {v(XO)}")
    A("s_lshl_b32 s37, s2, 12")
    A("s_lshl_b32 s38, s22, 9")
    A("s_add_u32 s37, s37, s38")
    A("s_lshl_b32 s23, s22, 8")
    A("s_add_u32 s23, s23, s2")
    A("s_lshl_b32 s39, s23, 11")
    A(f"s_add_u32 s40, s21, {O_F2}")
    A("s_waitcnt lgkmcnt(0)")
    srd(8, 6, "s40", 4 * MB)
    A(f"buffer_load_dwordx4 {v(IN,4)}, {v(GO)}, s[8:11], s37 offen")
    A(f"buffer_load_dwordx4 {v(IN+4,4)}, {v(GO)}, s[8:11], s37 offen offset:256")
    srd(16, 4, "s20", 4 * MB)
    A(f"buffer_load_dwordx4 {v(XR,4)}, {v(XO)}, s[16:19], s39 offen")
    A(f"buffer_load_dwordx4 {v(XR+4,4)}, {v(XO)}, s[16:19], s39 offen offset:1024")
    A(f"v_add_u32 {v(T0)}, 4096, {v(L16)}")
    A(f"v_add_u32 {v(T1)}, 8192, {v(L16)}")
    for n in range(10):
        A(f"global_load_dwordx4 {v(GC+4*n,4)}, {v((L16,T0,T1)[n>>2])}, s[30:31] offset:{1024*(n&3)}")
    A(f"s_add_u32 s40, s21, {O_X1}")
    srd(12, 6, "s40", 8 * MB)
    A("s_mov_b32 s24, 0x00010001")
    A("s_mov_b32 s25, 0x00010001")
    A("s_mov_b32 s26, 0xffff")
    A("s_mov_b32 s27, 0")
    A(f"v_lshrrev_b32 {v(T2)}, 1, {v(VC)}")
    A(f"v_lshlrev_b32 {v(T2)}, 8, {v(T2)}")
    A(f"v_add_u32 {v(T2)}, s2, {v(T2)}")
    A(f"v_and_b32 {v(T3)}, 1, {v(VC)}")
    A(f"v_mul_u32_u24 {v(T3)}, 1536, {v(T3)}")
    A(f"v_lshlrev_b32 {v(T4)}, 1, {v(VG)}")
    A(f"v_mad_u32_u24 {v(T3)}, {v(T4)}, {v(T2)}, {v(T3)}")
    A(f"v_add_u32 {v(T2)}, {v(T3)}, {v(T2)}")
    A(f"v_and_b32 {v(T3)}, 2047, {v(T3)}")
    A(f"v_and_b32 {v(T2)}, 2047, {v(T2)}")
    A(f"v_cvt_f32_u32 {v(T3)}, {v(T3)}")
    A(f"v_cvt_f32_u32 {v(T2)}, {v(T2)}")
    A(f"v_mul_f32 {v(T3)}, 0x3a000000, {v(T3)}")
    A(f"v_mul_f32 {v(T2)}, 0x3a000000, {v(T2)}")
    A(f"v_cos_f32 {v(E)}, {v(T3)}")
    A(f"v_sin_f32 {v(E+1)}, {v(T3)}")
    A(f"v_cos_f32 {v(E+2)}, {v(T2)}")
    A(f"v_sin_f32 {v(E+3)}, {v(T2)}")
    A(f"v_mul_f32 {v(E)}, 0x35800000, {v(E)}")
    A(f"v_mul_f32 {v(E+1)}, 0xb5800000, {v(E+1)}")
    A(f"v_mul_f32 {v(E+2)}, 0x35800000, {v(E+2)}")
    A(f"v_mul_f32 {v(E+3)}, 0xb5800000, {v(E+3)}")
    A(f"v_cvt_pk_bf16_f32 {v(T2)}, {v(E)}, {v(E+1)}")
    A(f"v_cvt_pk_bf16_f32 {v(T3)}, {v(E+2)}, {v(E+3)}")
    A(f"v_lshlrev_b32 {v(LW)}, 12, {v(VG)}")
    A(f"v_lshl_add_u32 {v(LW)}, {v(VC)}, 4, {v(LW)}")
    A("s_lshl_b32 s33, s22, 8")
    A(f"v_add_u32 {v(LW)}, s33, {v(LW)}")
    A("s_lshl_b32 s32, s22, 11")
    A(f"v_add_u32 {v(LR)}, s32, {v(L16)}")
    A(f"v_lshrrev_b32 {v(ZO)}, 1, {v(VC)}")
    A(f"v_lshlrev_b32 {v(ZO)}, 11, {v(ZO)}")
    A(f"v_and_b32 {v(T4)}, 1, {v(VC)}")
    A(f"v_lshl_add_u32 {v(ZO)}, {v(T4)}, 6, {v(ZO)}")
    A(f"v_lshl_add_u32 {v(ZO)}, {v(VG)}, 4, {v(ZO)}")
    A("s_lshr_b32 s41, s23, 4")
    A("s_lshl_b32 s41, s41, 15")
    A("s_and_b32 s42, s23, 15")
    A("s_lshl_b32 s42, s42, 7")
    A("s_add_u32 s41, s41, s42")
    A(f"s_add_u32 s41, s41, {4*MB}")
    A("s_add_u32 s42, s41, 16384")
    A(f"v_mov_b32 {v(T4)}, 0x8000")
    A(f"v_cmp_eq_u32 vcc, 0, {v(LN)}")
    A(f"v_cndmask_b32 {v(T4)}, 0, {v(T4)}, vcc")
    A.vm_wait_for(R("v", IN, 4))
    for t in range(4):
        if t == 2: A.vm_wait_for(R("v", IN+4, 4))
        mfma16(v(D+4*t,4), v(T2,2), v(IN+2*t,2), 0)
    for t in range(4):
        A(f"v_cvt_pk_bf16_f32 {v(P0+t)}, {v(D+4*t)}, {v(D+4*t+1)}")
        A(f"v_cvt_pk_bf16_f32 {v(P1+t)}, {v(D+4*t+2)}, {v(D+4*t+3)}")
    A(f"ds_write_b128 {v(LW)}, {v(P0,4)}")
    A(f"ds_write_b128 {v(LW)}, {v(P1,4)} offset:2048")
    A.vm_wait_for(R("v", XR, 8))
    for at in range(2):
        for i in range(4):
            A(f"v_lshlrev_b32 {v(Y+4*at+i)}, 16, {v(XR+4*at+i)}")
            A(f"v_and_b32 {v(Y+8+4*at+i)}, 0xffff0000, {v(XR+4*at+i)}")
    A("s_waitcnt lgkmcnt(0)")
    A("s_barrier")
    A(f"ds_read_b128 {v(P1,4)}, {v(LR)} offset:1024")
    A(f"ds_read_b128 {v(P0,4)}, {v(LR)}")
    A("s_waitcnt vmcnt(0) lgkmcnt(1)")
    mfma32(v(D,4), v(P1,4), v(GC,4), 0)
    mfma32(v(D+4,4), v(P1,4), v(GC+4,4), 0)
    for i in range(4):
        A(f"v_xor_b32 {v(P1n+i)}, 0x80008000, {v(P1+i)}")
    A("s_waitcnt lgkmcnt(0)")
    for i in range(4):
        A(f"v_cndmask_b32 {v(P0m+i)}, {v(P0+i)}, 0, s[24:25]")
    mfma32(v(E,4), v(P0,4), v(GC,4), 0)
    mfma32(v(D,4), v(P0m,4), v(GC,4), v(D,4))
    mfma32(v(D+4,4), v(P0m,4), v(GC+4,4), v(D+4,4))
    A(f"v_xor_b32 {v(P0)}, {v(P0)}, {v(T4)}")
    mfma32(v(D+8,4), v(P1n,4), v(GC+8,4), 0)
    mfma32(v(D+12,4), v(P1n,4), v(GC+12,4), 0)
    mfma32(v(D+8,4), v(P0m,4), v(GC+8,4), v(D+8,4))
    mfma32(v(D+12,4), v(P0m,4), v(GC+12,4), v(D+12,4))
    mfma32(v(E+4,4), v(P0,4), v(GC+8,4), 0)
    AR, AI = 48, 52
    PA = (56, 60)
    for q in range(2):
        cmul_pk(AR, AI, D+8*q, D+8*q+4, TC+4*q, TS+4*q, +1)
        A(f"v_cndmask_b32 {v(AI)}, {v(AI)}, {v(E+4*q)}, s[26:27]")
        for i in range(4):
            A(f"v_cvt_pk_bf16_f32 {v(PA[q]+i)}, {v(AR+i)}, {v(AI+i)}")
        for at in range(2):
            mfma32(v(Y+8*q+4*at,4), v(PA[q],4), v(HH+4*at,4), v(Y+8*q+4*at,4))
    XP = D
    for at in range(2):
        for i in range(4):
            A(f"v_cvt_pk_bf16_f32 {v(XP+4*at+i)}, {v(Y+4*at+i)}, {v(Y+8+4*at+i)}")
        A(f"buffer_store_dwordx4 {v(XP+4*at,4)}, {v(XO)}, s[12:15], s39 offen offset:{1024*at}{ST}")
    S2, Q2 = 96, 98
    A(f"v_pk_add_f32 {v(S2,2)}, {v(Y,2)}, {v(Y+2,2)}")
    A(f"v_pk_mul_f32 {v(Q2,2)}, {v(Y,2)}, {v(Y,2)}")
    for h in range(2, 16, 2):
        if h > 2:
            A(f"v_pk_add_f32 {v(S2,2)}, {v(S2,2)}, {v(Y+h,2)}")
        A(f"v_pk_fma_f32 {v(Q2,2)}, {v(Y+h,2)}, {v(Y+h,2)}, {v(Q2,2)}")
    A(f"v_add_f32 {v(S2)}, {v(S2)}, {v(S2+1)}")
    A(f"v_add_f32 {v(Q2)}, {v(Q2)}, {v(Q2+1)}")
    wave_reduce2(S2, Q2)
    A(f"v_readlane_b32 s34, {v(S2)}, 63")
    A(f"v_readlane_b32 s35, {v(Q2)}, 63")
    A(f"v_mov_b32 {v(T1)}, 0x3a800000")
    A(f"v_mul_f32 {v(T0)}, s34, {v(T1)}")
    A(f"v_mul_f32 {v(T1)}, s35, {v(T1)}")
    A(f"v_fma_f32 {v(T1)}, -{v(T0)}, {v(T0)}, {v(T1)}")
    A(f"v_max_f32 {v(T1)}, 0, {v(T1)}")
    A(f"v_add_f32 {v(T1)}, 0x3727c5ac, {v(T1)}")
    A(f"v_rsq_f32 {v(T2)}, {v(T1)}")
    A(f"v_mul_f32 {v(T0)}, -{v(T0)}, {v(T2)}")
    for h in range(0, 16, 2):
        A(f"v_pk_fma_f32 {v(Y+h,2)}, {v(Y+h,2)}, {v(T2,2)}, {v(T0,2)} op_sel_hi:[1,0,0]")
    ZP = D + 8
    for at in range(2):
        for i in range(4):
            A(f"v_cvt_pk_bf16_f32 {v(ZP+4*at+i)}, {v(Y+4*at+i)}, {v(Y+8+4*at+i)}")
        A(f"buffer_store_dwordx4 {v(ZP+4*at,4)}, {v(ZO)}, s[12:15], {s(41+at)} offen{ST}")
    A("s_endpgm")
    gen_gpack(2)
    kernels.append(("k3a_kernel", 128, 0, 100))
    kernels.append(("k3b_kernel", 128, 0, 100))

def gen_g1():
    for l, nm in enumerate(("g1a_kernel", "g1b_kernel")):
        entry(nm)
        A("s_load_dwordx2 s[4:5], s[0:1], 40")
        A("s_load_dwordx2 s[6:7], s[0:1], 80")
        A(f"s_mov_b32 s21, {LOFF(l)}")
        A("s_cmp_lt_u32 s2, 256")
        A("s_cbranch_scc1 L_g1_body")
        A("s_endpgm")
    A.raw(".p2align 6")
    A.label("L_g1_body")
    stamp(True); stamp()
    LN, L16, WV, VG, VC, AO, BO = 1, 2, 3, 4, 5, 6, 7
    ACC = 16
    WF = 128
    TMP = 184
    DA = 8
    RA = DA + 2
    NSLOT = 4
    SLOT = 28672
    def acc(ft, tt): return ACC + (ft * 4 + tt) * 4
    A(f"v_and_b32 {v(LN)}, 63, v0")
    A(f"v_lshlrev_b32 {v(L16)}, 4, {v(LN)}")
    A(f"v_lshrrev_b32 {v(WV)}, 6, v0")
    A(f"v_lshrrev_b32 {v(VG)}, 4, {v(LN)}")
    A(f"v_readfirstlane_b32 s22, {v(WV)}")
    A(f"v_and_b32 {v(VC)}, 15, {v(LN)}")
    A(f"v_lshlrev_b32 {v(AO)}, 7, {v(VC)}")
    A(f"v_lshl_add_u32 {v(AO)}, {v(VG)}, 4, {v(AO)}")
    for t in range(1, 4):
        A(f"v_add_u32 {v(8+t)}, {32768*t}, {v(AO)}")
    AOT = [AO, 9, 10, 11]
    A(f"v_lshlrev_b32 {v(BO)}, 4, {v(VG)}")
    A("s_and_b32 s40, s2, 1")
    A("s_lshl_b32 s40, s40, 2")
    A("s_bfe_u32 s41, s2, 0x20003")
    A("s_add_u32 s40, s40, s41")
    A("s_bfe_u32 s41, s2, 0x20001")
    A("s_lshl_b32 s41, s41, 3")
    A("s_lshr_b32 s42, s2, 5")
    A("s_add_u32 s41, s41, s42")
    A("s_lshl_b32 s43, s40, 2")
    A("s_add_u32 s43, s43, s22")
    A("s_lshl_b32 s44, s43, 17")
    A("s_add_u32 s44, s44, s21")
    A(f"s_add_u32 s44, s44, {O_ZN}")
    A("s_mul_i32 s45, s41, 229376")
    A("s_mul_i32 s46, s22, 7168")
    A("s_add_u32 s45, s45, s46")
    A(f"s_add_u32 s45, s45, {OFF_W1P}")
    A("s_lshr_b32 s47, s41, 1")
    A("s_mul_i32 s47, s47, 7")
    A("s_and_b32 s48, s41, 1")
    A("s_lshl_b32 s49, s48, 2")
    A("s_add_u32 s49, s49, s47")
    A("s_add_u32 s47, s47, 3")
    A("s_lshl_b32 s50, s49, 6")
    A("s_lshl_b32 s51, s47, 6")
    A("s_lshl_b32 s52, s48, 3")
    A("s_add_u32 s51, s51, s52")
    A("s_waitcnt lgkmcnt(0)")
    srd(8, 6, "s44", 131072)
    srd(12, 6, "s45", 229376)
    def dma_instrs(stage):
        slot = stage % NSLOT
        out = [f"s_add_u32 m0, s46, {slot*SLOT}", f"s_mov_b32 s54, {stage*SLOT}"]
        for n in range(4):
            out.append(f"buffer_load_dwordx4 {v(L16)}, s[12:15], s54 offen offset:{1024*n} lds")
        out += [f"s_add_u32 m0, s46, {slot*SLOT+4096}", f"s_mov_b32 s54, {stage*SLOT+4096}"]
        for n in range(3):
            out.append(f"buffer_load_dwordx4 {v(L16)}, s[12:15], s54 offen offset:{1024*n} lds")
        out[-1] += f" ;mark{stage}"
        return out
    def put(ins):
        A(ins)
        if ";mark" in ins: G1_mark(int(ins.split(";mark")[1]))
    def dma(stage):
        for ins in dma_instrs(stage): put(ins)
    def aload_instrs(k):
        so = (k >> 1) * 2048
        out = []
        if k % 2 == 0:
            out.append(f"s_mov_b32 s55, {so}")
        for t in (2 * (k & 1), 2 * (k & 1) + 1):
            for kk in (k & ~1, k | 1):
                out.append(f"buffer_load_dwordx4 {a((kk%RA)*16+4*t,4)}, {v(AOT[t])}, s[8:11], s55 offen offset:{64*(kk&1)}")
        return out
    dma(0)
    for k in range(4):
        for ins in aload_instrs(k): A(ins)
    srd(16, 4, 0, 7168)
    BI = WF
    for u in range(3):
        A(f"buffer_load_dwordx4 {v(BI+4*u,4)}, {v(BO)}, s[16:19], s50 offen offset:{64*u}")
    A(f"buffer_load_dwordx2 {v(BI+12,2)}, {v(BO)}, s[16:19], s51 offen")
    dma(1)
    for k in range(4, 8):
        for ins in aload_instrs(k): A(ins)
    dma(2)
    A("s_mul_i32 s56, s43, 458752")
    A("s_add_u32 s56, s56, s21")
    A(f"s_add_u32 s56, s56, {O_HP}")
    srd(24, 6, "s56", 458752)
    A("s_lshl_b32 s57, s49, 10")
    A("s_lshl_b32 s58, s47, 10")
    A("s_add_u32 s58, s58, s52")
    stamp()
    A.vm_wait_for(R("v", BI, 14))
    stamp()
    for ft in range(7):
        for h in range(2):
            src = BI + 2 * ft + h
            A(f"v_lshlrev_b32 {v(acc(ft,0)+2*h)}, 16, {v(src)}")
            A(f"v_and_b32 {v(acc(ft,0)+2*h+1)}, 0xffff0000, {v(src)}")
        for tt in range(1, 4):
            for h in range(2):
                A(f"v_pk_mov_b32 {v(acc(ft,tt)+2*h,2)}, {v(acc(ft,0)+2*h,2)}, {v(acc(ft,0)+2*h,2)} op_sel:[0,1]")
    A(f"v_add_u32 {v(12)}, {2*SLOT}, {v(L16)}")
    def wread(k, ft):
        stage, st = k >> 2, k & 3
        slot = stage % NSLOT
        off = (slot & 1) * SLOT + st * 7168 + ft * 1024
        base = L16 if slot < 2 else 12
        return f"ds_read_b128 {v(WF+(k&1)*28+4*ft,4)}, {v(base)} offset:{off}"
    A("s_barrier")
    for ft in range(7):
        A(wread(0, ft))
    for k in range(32):
        stage, st = k >> 2, k & 3
        side = []
        if k + 1 < 32:
            side += [wread(k + 1, ft) for ft in range(7)]
        if k + DA < 32 and "g1_noa" not in OPT:
            side += aload_instrs(k + DA)
        if st == 3 and stage + 3 < 8 and "g1_now" not in OPT:
            side += dma_instrs(stage + 3)
        A.lg_wait_for(R("v", WF + (k & 1) * 28, 28))
        A.vm_wait_for(R("a", (k % RA) * 16, 16))
        if k in (0, 8, 16, 24): stamp()
        if st == 3 and stage < 7:
            G1_wait_stage(stage + 1)
            A("s_barrier")
        for ft in range(7):
            for tt in range(4):
                if "g1_nomfma" not in OPT:
                    mfma32(v(acc(ft,tt),4), v(WF+(k&1)*28+4*ft,4), a((k%RA)*16+4*tt,4), v(acc(ft,tt),4))
                if side:
                    put(side.pop(0))
                    while side and side[0].startswith("s_"): put(side.pop(0))
        assert not side
    stamp()
    C1, C2 = 60, 62
    k2 = -2.0 * np.sqrt(2 / np.pi) * np.log2(np.e)
    A(f"s_mov_b32 s{C1}, 0x{int(f32_bits(k2*0.044715)):08x}")
    A(f"s_mov_b32 s{C1+1}, s{C1}")
    A(f"v_mov_b32 {v(TMP+16)}, 0x{int(f32_bits(k2)):08x}")
    A(f"v_mov_b32 {v(TMP+17)}, {v(TMP+16)}")
    def gelu4(r, t):
        for h in (0, 2):
            A(f"v_pk_mul_f32 {v(t+h,2)}, {v(r+h,2)}, {v(r+h,2)}")
        for h in (0, 2):
            A(f"v_pk_fma_f32 {v(t+h,2)}, {v(t+h,2)}, {s(C1,2)}, {v(TMP+16,2)}")
        for h in (0, 2):
            A(f"v_pk_mul_f32 {v(t+h,2)}, {v(t+h,2)}, {v(r+h,2)}")
        for i in range(4):
            A(f"v_exp_f32 {v(t+i)}, {v(t+i)}")
        for h in (0, 2):
            A(f"v_pk_add_f32 {v(t+h,2)}, {v(t+h,2)}, 1.0 op_sel_hi:[1,0]")
        for i in range(4):
            A(f"v_rcp_f32 {v(t+i)}, {v(t+i)}")
        for h in (0, 2):
            A(f"v_pk_mul_f32 {v(r+h,2)}, {v(t+h,2)}, {v(r+h,2)}")
    OUTR = WF
    cnt = 0
    for u in range(4):
        for tt in range(4):
            o = OUTR + 4 * (cnt % 8); cnt += 1
            nf = 2 if u < 3 else 1
            for t in range(nf):
                r = acc(2 * u + t, tt)
                if "g1_nogelu" not in OPT: gelu4(r, TMP + 4 * t + 8 * (tt & 1))
                A(f"v_cvt_pk_bf16_f32 {v(o+2*t)}, {v(r)}, {v(r+1)}")
                A(f"v_cvt_pk_bf16_f32 {v(o+2*t+1)}, {v(r+2)}, {v(r+3)}")
            A(f"s_add_u32 s59, {'s57' if u < 3 else 's58'}, {tt*114688}")
            if "g1_nostore" in OPT and (u or tt): continue
            if u < 3:
                A(f"buffer_store_dwordx4 {v(o,4)}, {v(L16)}, s[24:27], s59 offen offset:{1024*u}{ST}")
            else:
                A(f"buffer_store_dwordx2 {v(o,2)}, {v(L16)}, s[24:27], s59 offen{ST}")
    stamp()
    if "stamp" in OPT: A("s_waitcnt vmcnt(0)")
    stamp_flush(0, 16)
    A("s_endpgm")
    kernels.append(("g1a_kernel", 208, RA * 16, 100))
    kernels.append(("g1b_kernel", 208, RA * 16, 100))

_g1_marks = {}
def G1_mark(stage):
    A.vm[-1] = [("m", stage)]
def G1_wait_stage(stage):
    A.vm_wait_for([("m", stage)])

def gen_g2():
    for l, nm in enumerate(("g2a_kernel", "g2b_kernel")):
        entry(nm)
        A("s_load_dwordx2 s[4:5], s[0:1], 56")
        A("s_load_dwordx2 s[6:7], s[0:1], 80")
        A(f"s_load_dwordx2 s[28:29], s[0:1], {80 if l == 0 else 64}")
        A(f"s_mov_b32 s20, {OFF_X2 if l == 0 else 0}")
        A(f"s_mov_b32 s21, {LOFF(l)}")
        A("s_cmp_lt_u32 s2, 256")
        A("s_cbranch_scc1 L_g2_body")
        A("s_endpgm")
    A.raw(".p2align 6")
    A.label("L_g2_body")
    stamp(True); stamp()
    LN, L16, WV, VG, VC, XO, BO = 1, 2, 3, 4, 5, 6, 7
    HO = 8
    ACC = 16
    XR = 144
    BB = 160
    RD = 168
    NS = 5
    def acc(tt, ft): return ACC + (tt * 4 + ft) * 4
    A(f"v_and_b32 {v(LN)}, 63, v0")
    A(f"v_lshlrev_b32 {v(L16)}, 4, {v(LN)}")
    A(f"v_lshrrev_b32 {v(WV)}, 6, v0")
    A(f"v_lshrrev_b32 {v(VG)}, 4, {v(LN)}")
    A(f"v_readfirstlane_b32 s22, {v(WV)}")
    A(f"v_and_b32 {v(VC)}, 15, {v(LN)}")
    A(f"v_lshlrev_b32 {v(BO)}, 4, {v(VG)}")
    A(f"v_lshl_add_u32 {v(XO)}, {v(VC)}, 11, {v(BO)}")
    for d in range(4):
        A(f"s_add_u32 s50, s22, {d}")
        A("s_and_b32 s50, s50, 3")
        A("s_mul_i32 s51, s50, 229376")
        A(f"v_add_u32 {v(HO+2*d)}, s51, {v(L16)}")
        A(f"v_add_u32 {v(HO+2*d+1)}, 114688, {v(HO+2*d)}")
        A(f"s_mul_i32 {s(60+d)}, s50, 24576")
    A("s_bfe_u32 s40, s2, 0x20001")
    A("s_lshl_b32 s40, s40, 2")
    A("s_bfe_u32 s41, s2, 0x20003")
    A("s_add_u32 s40, s40, s41")
    A("s_and_b32 s41, s2, 1")
    A("s_lshl_b32 s41, s41, 3")
    A("s_lshr_b32 s42, s2, 5")
    A("s_add_u32 s41, s41, s42")
    A("s_mul_i32 s44, s40, 917504")
    A("s_lshl_b32 s43, s22, 10")
    A("s_add_u32 s44, s44, s43")
    A("s_add_u32 s44, s44, s21")
    A(f"s_add_u32 s44, s44, {O_HP}")
    A("s_mul_i32 s45, s41, 458752")
    A("s_lshl_b32 s43, s22, 12")
    A("s_add_u32 s45, s45, s43")
    A(f"s_add_u32 s45, s45, {OFF_W2P}")
    A("s_lshl_b32 s46, s40, 2")
    A("s_add_u32 s46, s46, s22")
    A("s_lshl_b32 s46, s46, 16")
    A("s_lshl_b32 s47, s41, 7")
    A("s_add_u32 s46, s46, s47")
    A("s_add_u32 s48, s46, 32768")
    A("s_waitcnt lgkmcnt(0)")
    srd(8, 6, "s44", 917504)
    srd(12, 6, "s45", 458752)
    def loads(i):
        r = (i % NS) * 48
        out = [f"s_mov_b32 s54, {i*16384}", f"s_mov_b32 s55, {i*4096}"]
        for ft in range(4):
            out.append(f"buffer_load_dwordx4 {a(r+32+4*ft,4)}, {v(L16)}, s[12:15], s54 offen offset:{1024*ft}")
        for tt in range(8):
            out.append(f"buffer_load_dwordx4 {a(r+4*tt,4)}, {v(HO+tt)}, s[8:11], s55 offen")
        return out
    for i in range(NS - 1):
        for ins in loads(i): A(ins)
    A(f"s_add_u32 s49, s21, {O_X1}")
    srd(16, 6, "s49", 4 * MB)
    srd(24, 28, "s20", 4 * MB)
    srd(32, 4, 0, 2048)
    for i in range(28):
        r = (i % NS) * 48
        side = loads(i + NS - 1) if i + NS - 1 < 28 and "g2_noload" not in OPT else []
        if i == 24:
            side = [f"buffer_load_dwordx4 {v(XR+8*t+4*u,4)}, {v(XO)}, s[16:19], {('s46','s48')[t]} offen offset:{64*u}"
                    for t in range(2) for u in range(2)]
            side += [f"buffer_load_dwordx4 {v(BB+4*u,4)}, {v(BO)}, s[32:35], s47 offen offset:{64*u}" for u in range(2)]
        n = 0
        for tt in range(8):
            A.vm_wait_for(R("a", r + 32, 16) + R("a", r + 4 * tt, 4))
            if tt == 0 and i in (0, 7, 14, 21): stamp()
            for ft in range(4):
                if "g2_nomfma" not in OPT or i == 0:
                    mfma32(v(acc(tt,ft),4), a(r+32+4*ft,4), a(r+4*tt,4), v(acc(tt,ft),4) if i else 0)
                n += 1
                if side and n % 2 == 0:
                    A(side.pop(0))
                    if side and side[0].startswith("s_"): A(side.pop(0))
        assert not side
    stamp()
    for d in range(1, 4):
        A(f"v_add_u32 {v(RD+40+d)}, {s(60+d)}, {v(L16)}")
        for n in range(8):
            A(f"ds_write_b128 {v(RD+40+d)}, {v(ACC+32*d+4*n,4)} offset:{8192*(d-1)+1024*n}")
    A(f"v_add_u32 {v(RD+41)}, s60, {v(L16)}")
    A("s_waitcnt vmcnt(0)")
    T = RD
    for t in range(2):
        for u in range(2):
            for h in range(2):
                r = ACC + (t * 4 + 2 * u + h) * 4
                for e in range(2):
                    x = XR + 8 * t + 4 * u + 2 * h + e
                    b = BB + 4 * u + 2 * h + e
                    A(f"v_lshlrev_b32 {v(T)}, 16, {v(x)}")
                    A(f"v_and_b32 {v(T+1)}, 0xffff0000, {v(x)}")
                    A(f"v_lshlrev_b32 {v(T+2)}, 16, {v(b)}")
                    A(f"v_and_b32 {v(T+3)}, 0xffff0000, {v(b)}")
                    A(f"v_pk_add_f32 {v(r+2*e,2)}, {v(r+2*e,2)}, {v(T,2)}")
                    A(f"v_pk_add_f32 {v(r+2*e,2)}, {v(r+2*e,2)}, {v(T+2,2)}")
    A("s_waitcnt lgkmcnt(0)")
    A("s_barrier")
    stamp()
    RB = ACC + 32
    for half in range(2):
        for sl in range(3):
            for n in range(4):
                nn = 4 * half + n
                A(f"ds_read_b128 {v(RB+32*sl+4*nn,4)}, {v(RD+41)} offset:{8192*sl+1024*nn}")
        for sl in range(3):
            A.lg_wait_for(R("v", RB + 32 * sl + 16 * half, 16))
            for n in range(0, 16, 2):
                A(f"v_pk_add_f32 {v(ACC+16*half+n,2)}, {v(ACC+16*half+n,2)}, {v(RB+32*sl+16*half+n,2)}")
        for u in range(2):
            o = XR + 8 * half + 4 * u
            for e in range(4):
                r = ACC + 16 * half + 8 * u + 2 * e
                A(f"v_cvt_pk_bf16_f32 {v(o+e)}, {v(r)}, {v(r+1)}")
            A(f"buffer_store_dwordx4 {v(o,4)}, {v(XO)}, s[24:27], {('s46','s48')[half]} offen offset:{64*u}{ST}")
    stamp()
    if "stamp" in OPT: A("s_waitcnt vmcnt(0)")
    stamp_flush(1, 16)
    A("s_endpgm")
    kernels.append(("g2a_kernel", 216, NS * 48, 100))
    kernels.append(("g2b_kernel", 216, NS * 48, 100))

def main(out):
    head = open(os.path.join(os.path.dirname(__file__), "..", "cdna_kernels", NAME + ".s.ref")).read().split("\n")
    head = [h for h in head if h.startswith(";") and "@launch" not in h and "Override" not in h and "grid=ceil" not in h]
    launches = [
        ("k1a_kernel", 384, 512, 16448), ("k2a_kernel", 480, 512, 32768), ("k3a_kernel", 480, 512, 32768),
        ("g1a_kernel", 256, 256, 4 * 28672), ("g2a_kernel", 256, 256, 98304),
        ("k1b_kernel", 256, 512, 16448), ("k2b_kernel", 256, 512, 16384), ("k3b_kernel", 256, 512, 16384),
        ("g1b_kernel", 256, 256, 4 * 28672), ("g2b_kernel", 256, 256, 98304),
    ]
    for n, g, b, l in launches:
        head.append(f"; @launch kernel={n} grid=({g},1,1) block=({b},1,1) lds={l}")
    A.raw('.amdgcn_target "amdgcn-amd-amdhsa--gfx950"\n.text')
    for g in (gen_k1, gen_k2, gen_k3, gen_g1, gen_g2):
        A.maxv = A.maxa = A.maxs = -1
        g()
        nm, vg, ag, sg = kernels[-1]
        assert A.maxv < vg and A.maxa < ag + (ag == 0) * 0 + (A.maxa < 0) and A.maxs < sg, (nm, A.maxv, A.maxa, A.maxs)
        print(nm, "maxv", A.maxv, "maxa", A.maxa, "maxs", A.maxs, file=sys.stderr)
    T = tables()
    for k in ("k1", "k2", "k3"):
        A.raw(f".p2align 8\n.type tbl_{k},@object\ntbl_{k}:")
        for ch in T[k]:
            for ln_ in range(0, 64, 2):
                A.raw(".long " + ",".join(f"0x{x:x}" for x in ch[ln_:ln_+2].ravel()))
        A.raw(f".size tbl_{k}, {1024*len(T[k])}")
    A.raw('.section .rodata,"a"')
    for nm, vg, ag, sg in kernels:
        A.raw(".p2align 6")
        A.raw(kernel_desc(nm, vg, ag, sg).rstrip())
    open(out, "w").write("\n".join(head) + "\n" + A.text())
    print("nops inserted:", A.nops, file=sys.stderr)

if __name__ == "__main__":
    main(sys.argv[1] if len(sys.argv) > 1 else os.path.join(os.path.dirname(__file__), "..", "cdna_kernels", NAME + ".s"))
```
